```python
import torch

def _softmax(x, axis=-1):
    return torch.softmax(x, dim=axis)
def _gelu(x):
    return torch.nn.functional.gelu(x, approximate="tanh")
def _silu(x):
    return torch.nn.functional.silu(x)
def _sigmoid(x):
    return torch.sigmoid(x)
def _layernorm(x, axis=-1, eps=1e-5):
    m = x.mean(dim=axis, keepdim=True)
    v = x.var(dim=axis, keepdim=True, unbiased=False)
    return (x - m) / torch.sqrt(v + eps)
def _scatter_add(tgt, idx, src, axis=0):
    return tgt.clone().index_add_(axis, idx, src)
def _segment_sum(src, seg, n):
    out = torch.zeros((n,) + src.shape[1:], dtype=src.dtype)
    return out.index_add_(0, seg, src)
def _pad(x, pw):
    flat = tuple(v for pair in reversed(pw) for v in pair)
    return torch.nn.functional.pad(x, flat)

kernel_name = 'concat_heads__spectral_gfnet__ssm_conv_s4d__prompt'

def setup_inputs():

    _w = (lambda a: (lambda t: t.to(torch.bfloat16) if t.is_floating_point() else t)(torch.as_tensor(a)))
    def _A_setup():
        B, S, D = 1, 2048, 1024
        Df = D // 2 + 1
        return {
            "x": _w((lambda *s: torch.randn(*s, dtype=torch.bfloat16) * 0.05)(B, S, D)),
            "w_r": _w((lambda *s: torch.randn(*s, dtype=torch.bfloat16) * 0.8)(S, Df) * 0.02),
            "w_i": _w((lambda *s: torch.randn(*s, dtype=torch.bfloat16) * 0.8)(S, Df) * 0.02),
        }
    _A_in = _A_setup()

    def _B_setup():
        Bsz, L, D, N = 1, 2048, 1024, 128
        return {
            "u": _w((lambda *s: torch.randn(*s, dtype=torch.bfloat16) * 0.05)(Bsz, L, D)),
            "log_A_real": _w((lambda *s: torch.randn(*s, dtype=torch.bfloat16) * 6.4)(D, N) * 0.5),
            "A_imag": _w((lambda *s: torch.randn(*s, dtype=torch.bfloat16) * 0.05)(D, N) * 3.14),
            "C_real": _w((lambda *s: torch.randn(*s, dtype=torch.bfloat16) * 0.05)(D, N) / N ** 0.5),
            "C_imag": _w((lambda *s: torch.randn(*s, dtype=torch.bfloat16) * 0.05)(D, N) / N ** 0.5),
            "log_dt": _w((lambda *s: torch.randn(*s, dtype=torch.bfloat16) * 0.05)(D) * 0.5 - 4.0),
            "D_skip": _w((lambda *s: torch.randn(*s, dtype=torch.bfloat16) * 0.05)(D)),
        }
    _B_in = _B_setup()

    return {
        "A_x": _A_in["x"],
        "A_w_r": _A_in["w_r"],
        "A_w_i": _A_in["w_i"],
        "B_u": _B_in["u"],
        "B_log_A_real": _B_in["log_A_real"],
        "B_A_imag": _B_in["A_imag"],
        "B_C_real": _B_in["C_real"],
        "B_C_imag": _B_in["C_imag"],
        "B_log_dt": _B_in["log_dt"],
        "B_D_skip": _B_in["D_skip"],
    }

def reference(A_x, A_w_r, A_w_i, B_u, B_log_A_real, B_A_imag, B_C_real, B_C_imag, B_log_dt, B_D_skip):
    def _A_ref(x, w_r, w_i):
        B, S, D = x.shape
        X = (lambda x, axes=(-2,-1): torch.fft.rfft2(x.float(), dim=axes))(x, axes=(-2, -1))
        W = w_r + 1j * w_i
        X = X * W
        y = (lambda x, s, axes=(-2,-1): torch.fft.irfft2(x, s=s, dim=axes).to(torch.bfloat16))(X, (S, D), axes=(-2, -1))
        return y

    def _B_ref(u, log_A_real, A_imag, C_real, C_imag, log_dt, D_skip):
        L = u.shape[1]
        dt = torch.exp(log_dt)
        A = -torch.exp(log_A_real) + 1j * A_imag
        C = (C_real + 1j * C_imag) * dt[:, None]
        pos = (lambda x, dt: x.to(dt))(torch.arange(L), log_dt.dtype)
        P = torch.exp((A * dt[:, None])[:, :, None] * pos[None, None, :])
        K = 2.0 * torch.einsum("dn,dnl->dl", C, P).real
        L2 = 2 * L
        u_t = (lambda x, *d: x.permute(*d))(u, 0, 2, 1)
        Kf = (lambda x, *a, **k: torch.fft.rfft(x.float(), *a, **k))(K, L2)
        Uf = (lambda x, *a, **k: torch.fft.rfft(x.float(), *a, **k))(u_t, L2)
        y = (lambda x, *a, **k: torch.fft.irfft(x, *a, **k).to(torch.bfloat16))(Uf * Kf[None, :, :], L2)[:, :, :L]
        y = (lambda x, *d: x.permute(*d))(y, 0, 2, 1)
        return y + u * D_skip[None, None, :]

    a = _A_ref(A_x, A_w_r, A_w_i)
    b = _B_ref(B_u, B_log_A_real, B_A_imag, B_C_real, B_C_imag, B_log_dt, B_D_skip)
    return torch.concatenate([a, b], axis=-1)
```

```python
import re
TRANS = ("v_exp_f32","v_log_f32","v_rcp_f32","v_rsq_f32","v_sqrt_f32","v_sin_f32","v_cos_f32")
def parse_reg(tok):
    tok = tok.strip()
    tok = tok.lstrip('-')
    m = re.match(r'^abs\((.*)\)$', tok)
    if m: tok = m.group(1)
    tok = tok.strip('|')
    m = re.match(r'^([vsa])(\d+)$', tok)
    if m: return [(m.group(1), int(m.group(2)))]
    m = re.match(r'^([vsa])\[(\d+):(\d+)\]$', tok)
    if m: return [(m.group(1), i) for i in range(int(m.group(2)), int(m.group(3))+1)]
    if tok == 'vcc': return [('s', 106), ('s', 107)]
    if tok == 'exec': return [('s', 126), ('s', 127)]
    if tok == 'm0': return [('s', 124)]
    return []

class Ins:
    def __init__(self, text):
        self.text = text
        t = text.split(';')[0].strip()
        self.op = t.split()[0] if t else ''
        rest = t[len(self.op):].strip()
        ops = [o.strip() for o in rest.split(',')] if rest else []
        self.ops = []
        for o in ops:
            self.ops.append(o.split()[0] if o.split() else o)
        op = self.op
        self.is_mfma = op.startswith('v_mfma')
        self.passes = 0
        if self.is_mfma:
            self.passes = 8 if '32x32x16' in op else (4 if '16x16x32' in op else 16)
        self.is_valu = op.startswith('v_') and not self.is_mfma
        self.is_trans = op.split('_e')[0] in TRANS or op in TRANS
        self.is_vmem = op.startswith(('buffer_', 'global_', 'flat_'))
        self.is_ds = op.startswith('ds_')
        self.is_salu = op.startswith('s_')
        self.is_store = (self.is_vmem and 'store' in op) or (self.is_ds and 'write' in op)
        self.dpp = ('dpp' in text.split(';')[0]) or ('row_' in text.split(';')[0]) or ('quad_perm' in text.split(';')[0])
        regs = [parse_reg(o) for o in self.ops]
        self.dst, self.src = [], []
        self.srcC = []
        self.srcAB = []
        if op in ('s_waitcnt','s_nop','s_barrier','s_endpgm','s_branch','s_setprio','s_sleep') or op.startswith('s_cbranch') or op.startswith('s_cmp'):
            for r in regs: self.src += r
        elif self.is_store:
            for r in regs: self.src += r
        elif op.startswith('v_permlane') and 'swap' in op:
            self.dst = regs[0] + regs[1]; self.src = regs[0] + regs[1]
        elif op.startswith(('v_add_co','v_sub_co','v_addc_co','v_subb_co')):
            self.dst = regs[0] + regs[1]
            for r in regs[2:]: self.src += r
        else:
            if regs:
                self.dst = regs[0]
                for r in regs[1:]: self.src += r
            if op.startswith('v_fmac') or 'd16' in op: self.src += regs[0]
            if self.is_mfma:
                self.srcAB = regs[1] + regs[2]; self.srcC = regs[3]
        self.states = 1
        if op == 's_nop': self.states = int(self.ops[0], 0) + 1
        if self.is_store and self.is_vmem and ('x4' in op or 'x3' in op):
            self.wide_data = regs[0]
        else:
            self.wide_data = []

def need(P, I):
    n = 0
    pd = set(P.dst)
    if P.is_mfma:
        tbl = {2:(5,4,1), 4:(8,6,3), 8:(12,10,7), 16:(20,18,15)}[P.passes]
        if I.is_mfma:
            if pd & set(I.srcAB): n = max(n, tbl[0])
            if pd & set(I.srcC):
                if not (list(P.dst) == list(I.srcC) and P.passes == I.passes): n = max(n, tbl[1])
        else:
            if pd & (set(I.src) | set(I.dst)): n = max(n, tbl[0])
        if I.is_valu and (set(P.srcC) & set(I.dst)): n = max(n, tbl[2])
    elif P.is_valu:
        pv = set(r for r in pd if r[0] in 'va')
        ps = set(r for r in pd if r[0] == 's')
        if I.is_mfma and (pv & set(I.src)): n = max(n, 2)
        if P.is_trans and I.is_valu and not I.is_trans and (pv & set(I.src)): n = max(n, 1)
        if P.is_trans and I.is_valu and I.is_trans and (pv & set(I.src)): n = max(n, 1)
        if I.is_valu and I.dpp and (pv & set(I.src)): n = max(n, 2)
        if I.op.startswith('v_permlane') and (pv & set(I.src)): n = max(n, 2)
        if I.op.startswith(('v_readlane','v_readfirstlane')) and (pv & set(I.src)): n = max(n, 1)
        if ps:
            if I.is_vmem and (ps & set(I.src)): n = max(n, 5)
            if I.is_valu and (ps & set(I.src)): n = max(n, 2)
            if I.op.startswith(('v_readlane','v_writelane')) and (ps & set(I.src)): n = max(n, 4)
            if I.is_salu and (ps & set(I.src)): n = max(n, 2)
    elif P.wide_data:
        if set(P.wide_data) & set(I.dst): n = max(n, 2)
    if P.is_salu and ('s',124) in pd and (I.is_ds or I.is_vmem): n = max(n, 1)
    return n

class Asm:
    def __init__(self):
        self.out = []
        self.hist = []
    def raw(self, text):
        self.out.append(text)
    def label(self, name):
        self.flush()
        self.out.append(name + ':')
    def __call__(self, text):
        for line in text.strip().split('\n'):
            line = line.strip()
            if not line or line.startswith(';'):
                continue
            self.emit(line)
    def emit(self, text):
        I = Ins(text)
        dist = 0; req = 0
        for P in reversed(self.hist[-24:]):
            r = need(P, I) - dist
            req = max(req, r)
            dist += P.states
            if dist >= 20: break
        while req > 0:
            k = min(req, 16)
            N = Ins('s_nop %d' % (k-1))
            self.out.append('    s_nop %d' % (k-1)); self.hist.append(N)
            req -= k
        self.out.append('    ' + text)
        self.hist.append(I)
    def flush(self):
        dist = 0; req = 0
        for P in reversed(self.hist[-24:]):
            w = 0
            if P.is_mfma: w = {2:5,4:8,8:12,16:20}[P.passes]
            elif P.is_valu: w = 5 if any(r[0]=='s' for r in P.dst) else 2
            elif P.wide_data: w = 2
            req = max(req, w - dist)
            dist += P.states
            if dist >= 20: break
        while req > 0:
            k = min(req, 16)
            self.out.append('    s_nop %d' % (k-1))
            req -= k
        self.hist = []
    def text(self):
        return '\n'.join(self.out) + '\n'
```

```python
import numpy as np
from asmlib import Asm

def bf16bits(x):
    u = np.asarray(x, dtype=np.float32).view(np.uint32)
    return (((u + 0x7FFF + ((u >> 16) & 1)) >> 16) & 0xFFFF).astype(np.uint32)

L = np.arange(64)
N32 = L % 32; Q = L // 32

def operand(fn):
    vals = np.zeros((64, 8), dtype=np.float64)
    for l in range(64):
        for t in range(8):
            vals[l, t] = fn(l % 32, l // 32, t)
    b = bf16bits(vals)
    return (b[:, 0::2] | (b[:, 1::2] << 16)).astype(np.uint32)

def f32regs(fn, nreg):
    vals = np.zeros((64, nreg), dtype=np.float32)
    for l in range(64):
        for r in range(nreg):
            vals[l, r] = fn(l % 32, l // 32, r)
    u = vals.view(np.uint32)
    return [u[:, 4*c:4*c+4] for c in range(nreg // 4)]

C = lambda num, den: np.cos(2*np.pi*(num % den)/den)
S = lambda num, den: np.sin(2*np.pi*(num % den)/den)
def slotrow(m, q, t):
    return 8*(2*m + t//4) + 4*q + t % 4
def drow(r, h):
    return 8*(r//4) + 4*h + r % 4

def tables1():
    T = []
    for mp in range(2):
        T.append(operand(lambda n, q, t: 1.0 if n == 16*mp + 8*q + t else 0.0))
    for m in range(2):
        T.append(operand(lambda n, q, t: C(slotrow(m, q, t)*n, 32)))
    for m in range(2):
        T.append(operand(lambda n, q, t: -S(slotrow(m, q, t)*n, 32)))
    T += f32regs(lambda n, h, r: C(drow(r, h)*n, 1024) if r < 16 else S(drow(r-16, h)*n, 1024), 32)
    def l2(cp):
        def f(m):
            def g(i, q, t):
                c, k1 = i // 16, i % 16
                d0 = slotrow(m, q, t)
                if cp == 0: return C(d0*k1, 32) if c == 0 else -S(d0*k1, 32)
                else: return S(d0*k1, 32) if c == 0 else C(d0*k1, 32)
            return operand(g)
        return [f(0), f(1)]
    T += l2(0) + l2(1)
    for c in range(2):
        for ks in range(4):
            def g(i, q, t):
                s1 = 8*ks + 4*q + t//2; cp = t % 2
                if c == 0: return C(s1*i, 32) if cp == 0 else S(s1*i, 32)
                else: return -S(s1*i, 32) if cp == 0 else C(s1*i, 32)
            T.append(operand(g))
    return T

def tables2():
    T = []
    for c in range(2):
        for mt in range(2):
            for ks in range(8):
                def g(i, q, t):
                    f = 32*mt + i; s = 8*ks + 4*q + t//2; cp = t % 2
                    if c == 0: return C(f*s, 64) if cp == 0 else S(f*s, 64)
                    else: return -S(f*s, 64) if cp == 0 else C(f*s, 64)
                T.append(operand(g))
    return T

def tables3():
    T = []
    for c in range(2):
        for ks in range(4):
            def g(i, q, t):
                f0 = 8*ks + 4*q + t//2; cp = t % 2
                if c == 0: return C(f0*i, 32) if cp == 0 else -S(f0*i, 32)
                else: return S(f0*i, 32) if cp == 0 else C(f0*i, 32)
            T.append(operand(g))
    for c in range(2):
        for ks in range(2):
            def g(n, q, t):
                k1 = 8*ks + 4*q + t//2; cp = t % 2
                if c == 0: return C(k1*n, 32) if cp == 0 else -S(k1*n, 32)
                else: return S(k1*n, 32) if cp == 0 else C(k1*n, 32)
            T.append(operand(g))
    T += f32regs(lambda n, h, r: C(drow(r, h)*n, 1024) if r < 16 else S(drow(r-16, h)*n, 1024), 32)
    for ks in range(4):
        def g(n, q, t):
            k0 = 8*ks + 4*q + t//2; cp = t % 2
            return C(k0*n, 32) if cp == 0 else -S(k0*n, 32)
        T.append(operand(g))
    return T

def emit_table(name, T):
    arr = np.concatenate([t.reshape(-1) for t in T])
    s = f".p2align 8\n.type {name},@object\n{name}:\n"
    for i in range(0, len(arr), 8):
        s += ".long " + ",".join("0x%x" % v for v in arr[i:i+8]) + "\n"
    s += f".size {name}, {len(arr)*4}\n"
    return s, len(arr)*4

G_OFF = 0
G_BYTES = 32*17*8192
H_OFF = 0x500000
H_BYTES = 64*17*4096

def srd(a, s, lo, hi, nbytes):
    a(f"s_mov_b32 s{s}, {lo}")
    a(f"s_mov_b32 s{s+1}, {hi}")
    a(f"s_mov_b32 s{s+2}, {nbytes}")
    a(f"s_mov_b32 s{s+3}, 0x20000")

def table_srd(a, s, name, nbytes):
    a(f"s_getpc_b64 s[{s}:{s+1}]")
    a(f"s_add_u32 s{s}, s{s}, {name}@rel32@lo+4")
    a(f"s_addc_u32 s{s+1}, s{s+1}, {name}@rel32@hi+12")
    a(f"s_mov_b32 s{s+2}, {nbytes}")
    a(f"s_mov_b32 s{s+3}, 0x20000")

def load_chunks(a, srd_s, vlane16, dst, first, n, rf='v', stmp=20):
    for c in range(n):
        off = (first + c) * 1024
        if off < 4096:
            a(f"buffer_load_dwordx4 {rf}[{dst+4*c}:{dst+4*c+3}], v{vlane16}, s[{srd_s}:{srd_s+3}], 0 offen offset:{off}")
        else:
            a(f"s_movk_i32 s{stmp}, {off & ~4095}" if (off & ~4095) < 32768 else f"s_mov_b32 s{stmp}, {off & ~4095}")
            a(f"buffer_load_dwordx4 {rf}[{dst+4*c}:{dst+4*c+3}], v{vlane16}, s[{srd_s}:{srd_s+3}], s{stmp} offen offset:{off & 4095}")

MF = "v_mfma_f32_32x32x16_bf16"

def k1(a, t1bytes):
    a.label("a1_kernel")
    a("s_cmp_ge_u32 s2, 64")
    a("s_cbranch_scc1 a1_done")
    a("s_load_dwordx2 s[24:25], s[0:1], 0")
    a("s_load_dwordx2 s[26:27], s[0:1], 96")
    table_srd(a, 12, "tab1", t1bytes)
    a("v_and_b32 v1, 63, v0")
    a("v_lshrrev_b32 v2, 6, v0")
    a("v_readfirstlane_b32 s16, v2")
    a("v_lshlrev_b32 v2, 4, v1")
    a("v_and_b32 v3, 31, v1")
    a("v_lshrrev_b32 v4, 5, v1")
    a("v_lshlrev_b32 v5, 6, v3")
    a("v_lshl_add_u32 v5, v4, 4, v5")
    a("s_waitcnt lgkmcnt(0)")
    srd(a, 4, "s24", "s25", 4194304)
    srd(a, 8, "s26", "s27", G_BYTES)
    a("s_lshl_b32 s17, s16, 8")
    a("s_add_u32 s17, s17, s2")
    a("s_lshl_b32 s17, s17, 11")
    XL = 8; ID = 16; FC = 24; FS = 32; TW = 40; L2R = 72; L2I = 80
    DX = 88; XA = 104; D1R = 112; D1I = 128; TBR = 144; TBI = 152; D2 = 160; XP = 176; TMP = 184
    a(f"buffer_load_dwordx4 v[{XL}:{XL+3}], v5, s[4:7], s17 offen")
    a(f"buffer_load_dwordx4 v[{XL+4}:{XL+7}], v5, s[4:7], s17 offen offset:32")
    load_chunks(a, 12, 2, ID, 0, 18)
    a("v_mul_u32_u24 v6, 144, v3")
    a("v_mul_u32_u24 v7, 18432, v4")
    a("v_add_u32 v6, v6, v7")
    a("s_lshl_b32 s18, s16, 4")
    a("v_add_u32 v6, s18, v6")
    a(f"s_add_u32 s18, s18, {512*144}")
    a("v_mov_b32 v7, s18")
    a("s_mov_b32 s19, 0")
    a.label("a1_rowloop")
    a("s_waitcnt vmcnt(0)")
    a(f"{MF} v[{DX}:{DX+15}], v[{XL}:{XL+3}], v[{ID}:{ID+3}], 0")
    a(f"{MF} v[{DX}:{DX+15}], v[{XL+4}:{XL+7}], v[{ID+4}:{ID+7}], v[{DX}:{DX+15}]")
    a("s_add_u32 s17, s17, 131072")
    a(f"buffer_load_dwordx4 v[{XL}:{XL+3}], v5, s[4:7], s17 offen")
    a(f"buffer_load_dwordx4 v[{XL+4}:{XL+7}], v5, s[4:7], s17 offen offset:32")
    for j in range(8):
        a(f"v_cvt_pk_bf16_f32 v{XA+j}, v{DX+2*j}, v{DX+2*j+1}")
    a(f"{MF} v[{D1R}:{D1R+15}], v[{XA}:{XA+3}], v[{FC}:{FC+3}], 0")
    a(f"{MF} v[{D1I}:{D1I+15}], v[{XA}:{XA+3}], v[{FS}:{FS+3}], 0")
    a(f"{MF} v[{D1R}:{D1R+15}], v[{XA+4}:{XA+7}], v[{FC+4}:{FC+7}], v[{D1R}:{D1R+15}]")
    a(f"{MF} v[{D1I}:{D1I+15}], v[{XA+4}:{XA+7}], v[{FS+4}:{FS+7}], v[{D1I}:{D1I+15}]")
    a(f"v_sub_f32 v{TMP}, v{D1R}, v{D1R+1}")
    for r in range(2, 16, 2):
        a(f"v_add_f32 v{TMP}, v{TMP}, v{D1R+r}")
        a(f"v_sub_f32 v{TMP}, v{TMP}, v{D1R+r+1}")
    a(f"v_readlane_b32 s22, v{TMP}, 0")
    a(f"v_readlane_b32 s23, v{TMP}, 32")
    for r in range(16):
        a(f"v_mul_f32 v{TMP+1}, v{D1R+r}, v{TW+r}")
        a(f"v_mul_f32 v{TMP+2}, v{D1I+r}, v{TW+r}")
        a(f"v_fma_f32 v{TMP+1}, v{D1I+r}, v{TW+16+r}, v{TMP+1}")
        a(f"v_fma_f32 v{D1I+r}, -v{D1R+r}, v{TW+16+r}, v{TMP+2}")
        a(f"v_mov_b32 v{D1R+r}, v{TMP+1}")
    for j in range(8):
        a(f"v_cvt_pk_bf16_f32 v{TBR+j}, v{D1R+2*j}, v{D1R+2*j+1}")
        a(f"v_cvt_pk_bf16_f32 v{TBI+j}, v{D1I+2*j}, v{D1I+2*j+1}")
    a(f"{MF} v[{D2}:{D2+15}], v[{L2R}:{L2R+3}], v[{TBR}:{TBR+3}], 0")
    a(f"{MF} v[{D2}:{D2+15}], v[{L2R+4}:{L2R+7}], v[{TBR+4}:{TBR+7}], v[{D2}:{D2+15}]")
    a(f"{MF} v[{D2}:{D2+15}], v[{L2I}:{L2I+3}], v[{TBI}:{TBI+3}], v[{D2}:{D2+15}]")
    a(f"{MF} v[{D2}:{D2+15}], v[{L2I+4}:{L2I+7}], v[{TBI+4}:{TBI+7}], v[{D2}:{D2+15}]")
    a(f"v_mov_b32 v{TMP}, s22")
    a(f"v_add_f32 v{TMP}, s23, v{TMP}")
    a(f"v_cvt_pk_bf16_f32 v{TMP}, v{TMP}, 0")
    a(f"ds_write_b32 v7, v{TMP}")
    for r in range(8):
        a(f"v_cvt_pk_bf16_f32 v{XP+r}, v{D2+r}, v{D2+r+8}")
        a(f"ds_write_b32 v6, v{XP+r} offset:{(8*(r//4) + r%4)*4608}")
    a("v_add_u32 v6, 4, v6")
    a("v_add_u32 v7, 4, v7")
    a("s_add_u32 s19, s19, 1")
    a("s_cmp_lt_u32 s19, 4")
    a.flush()
    a("s_cbranch_scc1 a1_rowloop")
    S1 = 16; TC = 48; TS = 64; BO = 80; GR = 96; GI = 112; GP = 128; TMP = 144
    a("s_waitcnt vmcnt(0)")
    load_chunks(a, 12, 2, S1, 18, 8)
    a("v_cvt_f32_u32 v8, s2")
    a("v_mul_f32 v8, 0x3a000000, v8")
    a("v_lshlrev_b32 v9, 2, v4")
    a("v_cvt_f32_u32 v9, v9")
    for r in range(16):
        f = float(8*(r//4) + r % 4)
        a(f"v_add_f32 v{TMP}, {f}, v9" if f in (0.0,1.0,2.0,4.0) else f"v_add_f32 v{TMP}, 0x{np.float32(f).view(np.uint32):08x}, v9")
        a(f"v_mul_f32 v{TMP}, v{TMP}, v8")
        a(f"v_cos_f32 v{TC+r}, v{TMP}")
        a(f"v_sin_f32 v{TS+r}, v{TMP}")
    a("v_mul_u32_u24 v6, 144, v3")
    a("v_lshl_add_u32 v6, v4, 4, v6")
    a("s_mul_i32 s18, s16, 4608")
    a("v_add_u32 v6, s18, v6")
    a(f"v_mul_u32_u24 v7, {4*17*8192}, v4")
    a("v_lshl_add_u32 v7, v3, 2, v7")
    a("s_mov_b32 s19, s16")
    a("s_waitcnt lgkmcnt(0)")
    a("s_barrier")
    a.label("a1_tileloop")
    for ks in range(4):
        a(f"ds_read_b128 v[{BO+4*ks}:{BO+4*ks+3}], v6 offset:{32*ks}")
    a("s_lshl_b32 s21, s19, 13")
    a("s_lshl_b32 s22, s2, 7")
    a("s_add_u32 s21, s21, s22")
    a("s_waitcnt vmcnt(0) lgkmcnt(0)")
    for ks in range(4):
        c0 = "0" if ks == 0 else f"v[{GR}:{GR+15}]"
        c1 = "0" if ks == 0 else f"v[{GI}:{GI+15}]"
        a(f"{MF} v[{GR}:{GR+15}], v[{S1+4*ks}:{S1+4*ks+3}], v[{BO+4*ks}:{BO+4*ks+3}], {c0}")
        a(f"{MF} v[{GI}:{GI+15}], v[{S1+16+4*ks}:{S1+16+4*ks+3}], v[{BO+4*ks}:{BO+4*ks+3}], {c1}")
    for r in range(16):
        a(f"v_mul_f32 v{TMP+1}, v{GR+r}, v{TC+r}")
        a(f"v_mul_f32 v{TMP+2}, v{GI+r}, v{TC+r}")
        a(f"v_fma_f32 v{TMP+1}, v{GI+r}, v{TS+r}, v{TMP+1}")
        a(f"v_fma_f32 v{TMP+2}, -v{GR+r}, v{TS+r}, v{TMP+2}")
        a(f"v_cvt_pk_bf16_f32 v{GP+r}, v{TMP+1}, v{TMP+2}")
        f = 8*(r//4) + r % 4
        a(f"s_add_u32 s22, s21, {f*17*8192}")
        a(f"buffer_store_dword v{GP+r}, v7, s[8:11], s22 offen")
    a(f"v_add_u32 v6, {8*4608}, v6")
    a("s_add_u32 s19, s19, 8")
    a("s_cmp_lt_u32 s19, 17")
    a.flush()
    a("s_cbranch_scc1 a1_tileloop")
    a.label("a1_done")
    a("s_endpgm")

def k2(a, t2bytes):
    a.label("a2_kernel")
    a("s_cmp_ge_u32 s2, 544")
    a("s_cbranch_scc1 a2_done")
    a("s_load_dwordx4 s[24:27], s[0:1], 8")
    a("s_load_dwordx2 s[28:29], s[0:1], 96")
    table_srd(a, 12, "tab2", t2bytes)
    a("s_and_b32 s16, s2, 31")
    a("s_lshr_b32 s17, s2, 5")
    a("v_lshlrev_b32 v2, 4, v0")
    a("v_and_b32 v3, 31, v0")
    a("v_lshrrev_b32 v4, 5, v0")
    a("s_waitcnt lgkmcnt(0)")
    srd(a, 4, "s28", "s29", G_BYTES)
    a(f"s_add_u32 s8, s28, {H_OFF}")
    a("s_addc_u32 s9, s29, 0")
    a(f"s_mov_b32 s10, {H_BYTES}")
    a("s_mov_b32 s11, 0x20000")
    srd(a, 32, "s24", "s25", 2048*513*2)
    srd(a, 36, "s26", "s27", 2048*513*2)
    DA = 8; AC = 40; WV = 104; TC = 168; TS = 200; TMP = 232
    a("s_mul_i32 s18, s16, 17")
    a("s_add_u32 s18, s18, s17")
    a("s_lshl_b32 s18, s18, 13")
    a("s_add_u32 s19, s18, 4096")
    a("v_lshlrev_b32 v5, 9, v4")
    a("v_lshl_add_u32 v5, v3, 2, v5")
    for ks in range(8):
        for b in range(4):
            off = (8*ks + b)*128
            sreg = 18 if off < 4096 else 19
            a(f"buffer_load_dword v{DA+4*ks+b}, v5, s[4:7], s{sreg} offen offset:{off & 4095}")
    load_chunks(a, 12, 2, 0, 0, 32, rf='a')
    a(f"v_mul_u32_u24 v6, {4*32*513*2}, v4")
    a("v_lshl_add_u32 v6, v3, 1, v6")
    a("s_mul_i32 s21, s16, 1026")
    a("s_lshl_b32 s22, s17, 6")
    a("s_add_u32 s21, s21, s22")
    for mt in range(2):
        for r in range(16):
            f1 = 32*mt + 8*(r//4) + r % 4
            a(f"s_add_u32 s22, s21, {f1*32832}")
            a(f"buffer_load_ushort v{WV+16*mt+r}, v6, s[32:35], s22 offen")
            a(f"buffer_load_ushort v{WV+32+16*mt+r}, v6, s[36:39], s22 offen")
    a("v_cvt_f32_u32 v7, s16")
    a("v_mul_f32 v7, 0x3a000000, v7")
    a("v_lshlrev_b32 v1, 2, v4")
    a("v_cvt_f32_u32 v1, v1")
    a("s_lshl_b32 s22, s17, 5")
    a("v_add_u32 v5, s22, v3")
    a("v_and_b32 v5, 511, v5")
    a("v_cmp_eq_u32 vcc, 0, v5")
    a("v_mov_b32 v5, 0x35800000")
    a("v_mov_b32 v6, 0x35000000")
    a("v_cndmask_b32 v5, v5, v6, vcc")
    for mt in range(2):
        for r in range(16):
            f = float(32*mt + 8*(r//4) + r % 4)
            a(f"v_add_f32 v{TMP}, 0x{np.float32(f).view(np.uint32):08x}, v1")
            a(f"v_mul_f32 v{TMP}, v{TMP}, v7")
            a(f"v_cos_f32 v{TMP+1}, v{TMP}")
            a(f"v_sin_f32 v{TMP+2}, v{TMP}")
            a(f"v_mul_f32 v{TC+16*mt+r}, v{TMP+1}, v5")
            a(f"v_mul_f32 v{TS+16*mt+r}, v{TMP+2}, v5")
    a("s_waitcnt vmcnt(63)")
    a("s_waitcnt vmcnt(0)")
    def dft(src):
        for ks in range(8):
            for m4 in range(4):
                c = "0" if ks == 0 else f"v[{AC+16*m4}:{AC+16*m4+15}]"
                ai = (m4*8 + ks)*4
                a(f"{MF} v[{AC+16*m4}:{AC+16*m4+15}], a[{ai}:{ai+3}], v[{src+4*ks}:{src+4*ks+3}], {c}")
    dft(DA)
    for mt in range(2):
        for r in range(16):
            fr = AC + 16*mt + r; fi = AC + 32 + 16*mt + r; w = WV + 16*mt + r
            a(f"v_lshlrev_b32 v{TMP}, 16, v{w}")
            a(f"v_lshlrev_b32 v{TMP+1}, 16, v{w+32}")
            a(f"v_mul_f32 v{TMP+2}, v{fr}, v{TMP}")
            a(f"v_mul_f32 v{TMP+3}, v{fr}, v{TMP+1}")
            a(f"v_fma_f32 v{TMP+2}, -v{fi}, v{TMP+1}, v{TMP+2}")
            a(f"v_fma_f32 v{TMP+3}, -v{fi}, v{TMP}, -v{TMP+3}")
            a(f"v_cvt_pk_bf16_f32 v{DA+16*mt+r}, v{TMP+2}, v{TMP+3}")
    dft(DA)
    a(f"v_mul_u32_u24 v5, {4*17*4096}, v4")
    a("v_lshl_add_u32 v5, v3, 2, v5")
    a("s_lshl_b32 s21, s17, 5")
    a("s_add_u32 s21, s21, s16")
    a("s_lshl_b32 s21, s21, 7")
    for mt in range(2):
        for r in range(16):
            fr = AC + 16*mt + r; fi = AC + 32 + 16*mt + r; c = TC + 16*mt + r; s = TS + 16*mt + r
            a(f"v_mul_f32 v{TMP+2}, v{fr}, v{c}")
            a(f"v_mul_f32 v{TMP+3}, v{fr}, v{s}")
            a(f"v_fma_f32 v{TMP+2}, v{fi}, v{s}, v{TMP+2}")
            a(f"v_fma_f32 v{TMP+3}, -v{fi}, v{c}, v{TMP+3}")
            a(f"v_cvt_pk_bf16_f32 v{DA+16*mt+r}, v{TMP+2}, v{TMP+3}")
            s0 = 32*mt + 8*(r//4) + r % 4
            a(f"s_add_u32 s22, s21, {s0*69632}")
            a(f"buffer_store_dword v{DA+16*mt+r}, v5, s[8:11], s22 offen")
    a.label("a2_done")
    a("s_endpgm")

def k3(a, t3bytes):
    a.label("a3_kernel")
    a("s_cmp_ge_u32 s2, 64")
    a("s_cbranch_scc1 a3_done")
    a("s_load_dwordx2 s[24:25], s[0:1], 80")
    a("s_load_dwordx2 s[26:27], s[0:1], 96")
    table_srd(a, 12, "tab3", t3bytes)
    a("v_and_b32 v1, 63, v0")
    a("v_lshrrev_b32 v2, 6, v0")
    a("v_readfirstlane_b32 s16, v2")
    a("v_lshlrev_b32 v2, 4, v1")
    a("v_and_b32 v3, 31, v1")
    a("v_lshrrev_b32 v4, 5, v1")
    a("s_waitcnt lgkmcnt(0)")
    srd(a, 4, "s24", "s25", 2048*2048*2)
    a(f"s_add_u32 s8, s26, {H_OFF}")
    a("s_addc_u32 s9, s27, 0")
    a(f"s_mov_b32 s10, {H_BYTES}")
    a("s_mov_b32 s11, 0x20000")
    S1 = 16; L1 = 48; TW = 64; L2 = 96; BO = 112; ZR = 128; ZI = 144; ZP = 160; TMP = 176; Y = 184
    load_chunks(a, 12, 2, S1, 0, 24)
    a("v_lshlrev_b32 v5, 9, v4")
    a("v_lshl_add_u32 v5, v3, 2, v5")
    a(f"v_mul_u32_u24 v6, {4*2176}, v4")
    a("v_lshl_add_u32 v6, v3, 2, v6")
    a("s_lshl_b32 s18, s16, 7")
    a("v_add_u32 v6, s18, v6")
    a("s_mov_b32 s19, s16")
    a.label("a3_tileloop")
    a("s_mul_i32 s21, s2, 17")
    a("s_add_u32 s21, s21, s19")
    a("s_lshl_b32 s21, s21, 12")
    for ks in range(4):
        for b in range(4):
            a(f"buffer_load_dword v{BO+4*ks+b}, v5, s[8:11], s21 offen offset:{(8*ks+b)*128}")
    a("s_waitcnt vmcnt(0)")
    for ks in range(4):
        c0 = "0" if ks == 0 else f"v[{ZR}:{ZR+15}]"
        c1 = "0" if ks == 0 else f"v[{ZI}:{ZI+15}]"
        a(f"{MF} v[{ZR}:{ZR+15}], v[{S1+4*ks}:{S1+4*ks+3}], v[{BO+4*ks}:{BO+4*ks+3}], {c0}")
        a(f"{MF} v[{ZI}:{ZI+15}], v[{S1+16+4*ks}:{S1+16+4*ks+3}], v[{BO+4*ks}:{BO+4*ks+3}], {c1}")
    for r in range(16):
        a(f"v_cvt_pk_bf16_f32 v{ZP+r}, v{ZR+r}, v{ZI+r}")
        a(f"ds_write_b32 v6, v{ZP+r} offset:{(8*(r//4)+r%4)*2176}")
    a("v_add_u32 v6, 1024, v6")
    a("s_add_u32 s19, s19, 8")
    a("s_cmp_lt_u32 s19, 17")
    a.flush()
    a("s_cbranch_scc1 a3_tileloop")
    a("s_mul_i32 s18, s16, 8704")
    a("v_add_u32 v6, s18, v5")
    a("s_add_u32 s18, s18, 2048")
    a("v_mov_b32 v7, s18")
    a("v_lshlrev_b32 v8, 6, v3")
    a("v_lshl_add_u32 v8, v4, 3, v8")
    a("s_lshl_b32 s17, s16, 8")
    a("s_add_u32 s17, s17, s2")
    a("s_lshl_b32 s17, s17, 12")
    a("s_mov_b32 s19, 0")
    a("s_waitcnt lgkmcnt(0)")
    a("s_barrier")
    a.label("a3_rowloop")
    for ks in range(2):
        for b in range(4):
            a(f"ds_read_b32 v{BO+4*ks+b}, v6 offset:{(8*ks+b)*128}")
    a(f"ds_read_b32 v{TMP}, v7")
    a("s_waitcnt lgkmcnt(0)")
    VR = ZR; VI = ZI; VP = ZP
    a(f"{MF} v[{VR}:{VR+15}], v[{BO}:{BO+3}], v[{L1}:{L1+3}], 0")
    a(f"{MF} v[{VI}:{VI+15}], v[{BO}:{BO+3}], v[{L1+8}:{L1+11}], 0")
    a(f"{MF} v[{VR}:{VR+15}], v[{BO+4}:{BO+7}], v[{L1+4}:{L1+7}], v[{VR}:{VR+15}]")
    a(f"{MF} v[{VI}:{VI+15}], v[{BO+4}:{BO+7}], v[{L1+12}:{L1+15}], v[{VI}:{VI+15}]")
    a(f"v_lshlrev_b32 v{TMP}, 16, v{TMP}")
    for r in range(16):
        if r % 2 == 0: a(f"v_mov_b32 v{Y+r}, v{TMP}")
        else: a(f"v_sub_f32 v{Y+r}, 0, v{TMP}")
    for r in range(16):
        a(f"v_mul_f32 v{TMP+1}, v{VR+r}, v{TW+r}")
        a(f"v_mul_f32 v{TMP+2}, v{VI+r}, v{TW+r}")
        a(f"v_fma_f32 v{TMP+1}, -v{VI+r}, v{TW+16+r}, v{TMP+1}")
        a(f"v_fma_f32 v{TMP+2}, v{VR+r}, v{TW+16+r}, v{TMP+2}")
        a(f"v_cvt_pk_bf16_f32 v{VP+r}, v{TMP+1}, v{TMP+2}")
    for ks in range(4):
        a(f"{MF} v[{Y}:{Y+15}], v[{VP+4*ks}:{VP+4*ks+3}], v[{L2+4*ks}:{L2+4*ks+3}], v[{Y}:{Y+15}]")
    for aa in range(4):
        a(f"v_cvt_pk_bf16_f32 v{TMP+2*(aa%2)+2}, v{Y+4*aa}, v{Y+4*aa+1}")
        a(f"v_cvt_pk_bf16_f32 v{TMP+2*(aa%2)+3}, v{Y+4*aa+2}, v{Y+4*aa+3}")
        a(f"buffer_store_dwordx2 v[{TMP+2*(aa%2)+2}:{TMP+2*(aa%2)+3}], v8, s[4:7], s17 offen offset:{16*aa}")
    a("v_add_u32 v6, 2176, v6")
    a("v_add_u32 v7, 2176, v7")
    a("s_add_u32 s17, s17, 262144")
    a("s_add_u32 s19, s19, 1")
    a("s_cmp_lt_u32 s19, 4")
    a.flush()
    a("s_cbranch_scc1 a3_rowloop")
    a.label("a3_done")
    a("s_endpgm")

def desc(name, vgpr, accum, sgpr=102):
    return f""".amdhsa_kernel {name}
  .amdhsa_next_free_vgpr {vgpr}
  .amdhsa_next_free_sgpr {sgpr}
  .amdhsa_accum_offset {accum}
  .amdhsa_group_segment_fixed_size 0
  .amdhsa_kernarg_size 104
  .amdhsa_user_sgpr_count 2
  .amdhsa_user_sgpr_kernarg_segment_ptr 1
  .amdhsa_system_sgpr_workgroup_id_x 1
.end_amdhsa_kernel
"""

def kernel_head(name):
    return f".globl {name}\n.p2align 8\n.type {name},@function\n"
```

```python
import numpy as np
from asmlib import Asm
from genA import srd, desc, kernel_head
MF16 = "v_mfma_f32_16x16x32_bf16"
X0 = 2064
UT_B = 4672; KE_B = 4224; KD_B = 1344
CH_B = UT_B + 2*KE_B + KD_B
UT_O = 0; KE_O = UT_B; KO_O = UT_B + KE_B; KD_O = UT_B + 2*KE_B
LDS_B = 4*CH_B
def f2u(f): return "0x%08x" % np.float32(f).view(np.uint32)

def kB(a):
    a.label("b_kernel")
    a("s_cmp_ge_u32 s2, 256")
    a("s_cbranch_scc1 b_done")
    a("s_load_dwordx16 s[40:55], s[0:1], 24")
    a("s_and_b32 s3, s2, 7")
    a("s_lshl_b32 s3, s3, 5")
    a("s_lshr_b32 s16, s2, 3")
    a("s_add_u32 s3, s3, s16")
    a("v_and_b32 v1, 63, v0")
    a("v_lshrrev_b32 v2, 6, v0")
    a("v_readfirstlane_b32 s16, v2")
    a("v_and_b32 v3, 15, v1")
    a("v_lshrrev_b32 v4, 4, v1")
    a("s_waitcnt lgkmcnt(0)")
    srd(a, 4, "s40", "s41", 4194304)
    srd(a, 8, "s42", "s43", 262144)
    srd(a, 12, "s44", "s45", 262144)
    srd(a, 20, "s46", "s47", 262144)
    srd(a, 24, "s48", "s49", 262144)
    srd(a, 28, "s50", "s51", 2048)
    srd(a, 32, "s52", "s53", 2048)
    srd(a, 36, "s54", "s55", 8388608)
    a("s_lshl_b32 s17, s3, 2")
    a("s_add_u32 s17, s17, s16")
    a(f"s_mul_i32 s18, s16, {CH_B}")
    UL = 200
    a("v_lshlrev_b32 v5, 14, v0")
    a("s_lshl_b32 s19, s3, 3")
    for r in range(8):
        if r*2048 < 4096:
            a(f"buffer_load_dwordx2 v[{UL+2*r}:{UL+2*r+1}], v5, s[4:7], s19 offen offset:{r*2048}")
        else:
            a(f"s_add_u32 s56, s19, {r*2048}")
            a(f"buffer_load_dwordx2 v[{UL+2*r}:{UL+2*r+1}], v5, s[4:7], s56 offen")
    a("s_lshl_b32 s19, s17, 1")
    a("v_mov_b32 v6, 0")
    a("buffer_load_ushort v10, v6, s[28:31], s19 offen")
    a("buffer_load_ushort v11, v6, s[32:35], s19 offen")
    PL = 16
    a("v_lshlrev_b32 v7, 3, v4")
    a("s_lshl_b32 s19, s17, 8")
    for k, sr in enumerate((8, 12, 20, 24)):
        a(f"buffer_load_dwordx2 v[{PL+2*k}:{PL+2*k+1}], v7, s[{sr}:{sr+3}], s19 offen")
    a("v_mov_b32 v12, 0"); a("v_mov_b32 v13, 0"); a("v_mov_b32 v14, 0"); a("v_mov_b32 v15, 0")
    a("v_lshlrev_b32 v8, 4, v1")
    a("v_and_b32 v9, 0x1f0, v8")
    a("v_add_u32 v9, s18, v9")
    a(f"ds_write_b128 v9, v[12:15] offset:{UT_O}")
    a("v_and_b32 v9, 0x30, v8")
    a("v_add_u32 v9, s18, v9")
    a(f"ds_write_b128 v9, v[12:15] offset:{UT_O + (256+2048)*2}")
    a("v_cvt_f32_u32 v12, v3")
    a("v_cmp_eq_u32 vcc, 0, v3")
    a("v_mov_b32 v13, 16")
    a("v_cndmask_b32 v13, v3, v13, vcc")
    a("v_lshlrev_b32 v13, 4, v13")
    a("v_cvt_f32_u32 v13, v13")
    a("s_mov_b64 s[58:59], vcc")
    a("s_waitcnt vmcnt(4)")
    a("v_lshlrev_b32 v10, 16, v10")
    a(f"v_mul_f32 v10, {f2u(np.log2(np.e))}, v10")
    a("v_exp_f32 v10, v10")
    a("v_cvt_pk_bf16_f32 v10, v10, 0")
    a("v_lshlrev_b32 v10, 16, v10")
    a("v_lshlrev_b32 v11, 16, v11")
    a(f"v_mul_f32 v14, {f2u(np.log2(np.e))}, v10")
    a(f"v_mul_f32 v15, {f2u(1/(2*np.pi))}, v10")
    a("v_add_f32 v9, v10, v10")
    a("s_mov_b32 s60, 0x05040100")
    a("s_mov_b32 s61, 0x07060302")
    UT = 216
    a("v_lshlrev_b32 v5, 4, v0")
    for c in range(4):
        for p in range(4):
            lo = UL + 4*p + (c//2); hi = UL + 4*p + 2 + (c//2)
            a(f"v_perm_b32 v{UT+4*c+p}, v{hi}, v{lo}, s{60 + c%2}")
        a(f"ds_write_b128 v5, v[{UT+4*c}:{UT+4*c+3}] offset:{c*CH_B + UT_O + 512}")
    ACC = 24
    P = 40
    AO = 56
    BO = 72
    T = 88
    for r in range(16): a(f"v_mov_b32 v{ACC+r}, 0")
    a("s_mov_b32 s62, 0")
    a.label("b_kloop")
    a("s_waitcnt vmcnt(0)")
    for k in range(4):
        a(f"v_lshlrev_b32 v{P+4*k}, 16, v{PL+2*k}")
        a(f"v_and_b32 v{P+4*k+1}, 0xffff0000, v{PL+2*k}")
        a(f"v_lshlrev_b32 v{P+4*k+2}, 16, v{PL+2*k+1}")
        a(f"v_and_b32 v{P+4*k+3}, 0xffff0000, v{PL+2*k+1}")
    a("s_add_u32 s19, s19, 32")
    for k, sr in enumerate((8, 12, 20, 24)):
        a(f"buffer_load_dwordx2 v[{PL+2*k}:{PL+2*k+1}], v7, s[{sr}:{sr+3}], s19 offen")
    for b in range(4):
        lar, aim, cr, ci = P+b, P+4+b, P+8+b, P+12+b
        a(f"v_mul_f32 v{T}, {f2u(np.log2(np.e))}, v{lar}")
        a(f"v_exp_f32 v{T}, v{T}")
        a(f"v_cvt_pk_bf16_f32 v{T}, v{T}, 0")
        a(f"v_lshlrev_b32 v{T}, 16, v{T}")
        a(f"v_mul_f32 v{T}, v{T}, v14")
        a(f"v_mul_f32 v{T+1}, v{aim}, v15")
        a(f"v_mul_f32 v{cr}, v{cr}, v9")
        a(f"v_mul_f32 v{ci}, v{ci}, v9")
        a(f"v_mul_f32 v{T+2}, -v{T}, v12")
        a(f"v_exp_f32 v{T+2}, v{T+2}")
        a(f"v_mul_f32 v{T+3}, v{T+1}, v12")
        a(f"v_fract_f32 v{T+3}, v{T+3}")
        a(f"v_cos_f32 v{T+4}, v{T+3}")
        a(f"v_sin_f32 v{T+5}, v{T+3}")
        a(f"v_mul_f32 v{T+4}, v{T+4}, v{T+2}")
        a(f"v_mul_f32 v{T+5}, v{T+5}, v{T+2}")
        a(f"v_mul_f32 v{T+2}, -v{T}, v13")
        a(f"v_exp_f32 v{T+2}, v{T+2}")
        a(f"v_mul_f32 v{T+3}, v{T+1}, v13")
        a(f"v_fract_f32 v{T+3}, v{T+3}")
        a(f"v_cos_f32 v{T+6}, v{T+3}")
        a(f"v_sin_f32 v{T+7}, v{T+3}")
        a(f"v_mul_f32 v{T+6}, v{T+6}, v{T+2}")
        a(f"v_mul_f32 v{T+7}, v{T+7}, v{T+2}")
        a(f"v_cndmask_b32 v{T+8}, v{T+6}, 1.0, s[58:59]")
        a(f"v_cndmask_b32 v{T+9}, v{T+7}, 0, s[58:59]")
        for m in range(4):
            xr, xi = (T+8, T+9) if m == 0 else (T+6, T+7)
            if m > 0:
                for (r_, i_) in ((T+4, T+5), (T+6, T+7)):
                    a(f"v_mul_f32 v{T+10}, v{i_}, v{i_}")
                    a(f"v_mul_f32 v{i_}, v{r_}, v{i_}")
                    a(f"v_fma_f32 v{r_}, v{r_}, v{r_}, -v{T+10}")
                    a(f"v_add_f32 v{i_}, v{i_}, v{i_}")
            a(f"v_mul_f32 v{T+10}, v{cr}, v{xr}")
            a(f"v_mul_f32 v{T+11}, v{cr}, v{xi}")
            a(f"v_fma_f32 v{T+10}, -v{ci}, v{xi}, v{T+10}")
            a(f"v_fma_f32 v{T+11}, -v{ci}, v{xr}, -v{T+11}")
            a(f"v_cvt_pk_bf16_f32 v{AO+4*m+b}, v{T+10}, v{T+11}")
            a(f"v_cvt_pk_bf16_f32 v{BO+4*m+b}, v{T+4}, v{T+5}")
    for m in range(4):
        a(f"{MF16} v[{ACC+4*m}:{ACC+4*m+3}], v[{AO+4*m}:{AO+4*m+3}], v[{BO+4*m}:{BO+4*m+3}], v[{ACC+4*m}:{ACC+4*m+3}]")
    a("s_add_u32 s62, s62, 1")
    a("s_cmp_lt_u32 s62, 8")
    a.flush()
    a("s_cbranch_scc1 b_kloop")
    a("v_lshlrev_b32 v5, 6, v4")
    a("v_add_u32 v5, v5, v3")
    a("v_lshlrev_b32 v5, 1, v5")
    a("v_add_u32 v5, s18, v5")
    for m in range(4):
        for r in range(4):
            a(f"v_cvt_pk_bf16_f32 v{T+4*m+r}, v{ACC+4*m+r}, 0")
    for r in range(4):
        a(f"ds_write_b16 v5, v{T+r} offset:{KD_O + 32*r}")
    a("s_mov_b32 exec_lo, 0")
    for m in range(1, 4):
        for r in range(4):
            a(f"ds_write_b16 v5, v{T+4*m+r} offset:{KD_O + 256*m + 32*r}")
    a("s_mov_b32 exec_lo, 1")
    a("s_mov_b32 exec_hi, 0")
    a(f"ds_write_b16 v5, v{T+12} offset:{KD_O + 1280}")
    a(f"v_mov_b32 v{T}, 0")
    a(f"ds_write_b16 v5, v{T} offset:{KD_O + 1282}")
    a("s_mov_b64 exec, -1")
    a("v_lshlrev_b32 v5, 3, v1")
    a(f"v_sub_u32 v5, {X0}, v5")
    a("v_lshlrev_b32 v6, 4, v1")
    a("v_add_u32 v6, s18, v6")
    a(f"s_add_u32 s19, s18, {KD_O}")
    a("s_waitcnt lgkmcnt(0)")
    E = 40
    for c in range(5):
        for t in range(9):
            a(f"v_subrev_u32 v{T}, {512*c + t}, v5")
            a(f"v_cvt_f32_i32 v{T+1}, v{T}")
            a(f"v_cvt_pk_bf16_f32 v{T+1}, v{T+1}, 0")
            a(f"v_subrev_u32 v{T+1}, {0x4300 - 128}, v{T+1}")
            a(f"v_cmp_gt_i32 vcc, 128, v{T}")
            a(f"v_cndmask_b32 v{T+1}, v{T+1}, v{T}, vcc")
            a(f"v_cmp_gt_u32 vcc, 2048, v{T}")
            a(f"v_cndmask_b32 v{T+1}, 641, v{T+1}, vcc") if False else None
            a(f"v_mov_b32 v{T+2}, 641")
            a(f"v_cndmask_b32 v{T+1}, v{T+2}, v{T+1}, vcc")
            a(f"v_lshl_add_u32 v{T+1}, v{T+1}, 1, s19")
            a(f"ds_read_u16 v{E+t}, v{T+1}")
        a("s_waitcnt lgkmcnt(0)")
        for p in range(4):
            a(f"v_lshl_or_b32 v{E+12+p}, v{E+2*p+1}, 16, v{E+2*p}")
            a(f"v_lshl_or_b32 v{E+16+p}, v{E+2*p+2}, 16, v{E+2*p+1}")
        if c == 4:
            a("s_mov_b32 exec_lo, 0xff"); a("s_mov_b32 exec_hi, 0")
        a(f"ds_write_b128 v6, v[{E+12}:{E+15}] offset:{KE_O + 1024*c}")
        a(f"ds_write_b128 v6, v[{E+16}:{E+19}] offset:{KO_O + 1024*c}")
        if c == 4:
            a("s_mov_b64 exec, -1")
    a("v_lshlrev_b32 v5, 3, v4")
    a("v_sub_u32 v5, v5, v3")
    a(f"v_add_u32 v5, {X0}, v5")
    a("v_and_b32 v6, 1, v5")
    a("v_and_b32 v5, -2, v5")
    a("v_lshlrev_b32 v5, 1, v5")
    a(f"v_mul_u32_u24 v6, {KE_B}, v6")
    a("v_add3_u32 v5, v5, v6, s18")
    a(f"v_add_u32 v5, {KE_O}, v5")
    a("v_lshlrev_b32 v6, 5, v3")
    a("v_lshl_add_u32 v6, v4, 4, v6")
    a("v_add_u32 v6, s18, v6")
    Y = 24; BB = 56; AA = 92
    for r in range(32): a(f"v_mov_b32 v{Y+r}, 0")
    a("s_waitcnt lgkmcnt(0)")
    a("s_barrier")
    a(f"ds_read_b128 v[{BB}:{BB+3}], v6 offset:{UT_O}")
    for aa in range(1, 9):
        a(f"v_subrev_u32 v7, {512*aa}, v5")
        a(f"ds_read2_b32 v[{AA}:{AA+1}], v7 offset0:0 offset1:1")
        a(f"ds_read2_b32 v[{AA+2}:{AA+3}], v7 offset0:2 offset1:3")
        a("s_waitcnt lgkmcnt(0)")
        tt = aa - 1
        a(f"{MF16} v[{Y+4*tt}:{Y+4*tt+3}], v[{AA}:{AA+3}], v[{BB}:{BB+3}], v[{Y+4*tt}:{Y+4*tt+3}]")
    a("s_mov_b32 s62, 0")
    a.label("b_cloop")
    for b in range(8):
        a(f"ds_read_b128 v[{BB+4*b}:{BB+4*b+3}], v6 offset:{UT_O + 512*(b+1)}")
    for aa in range(8):
        A = AA + 4*(aa % 2)
        a(f"v_subrev_u32 v7, {512*aa}, v5")
        a(f"ds_read2_b32 v[{A}:{A+1}], v7 offset0:0 offset1:1")
        a(f"ds_read2_b32 v[{A+2}:{A+3}], v7 offset0:2 offset1:3")
        a("s_waitcnt lgkmcnt(0)")
        for b in range(8 - aa):
            tt = aa + b
            a(f"{MF16} v[{Y+4*tt}:{Y+4*tt+3}], v[{A}:{A+3}], v[{BB+4*b}:{BB+4*b+3}], v[{Y+4*tt}:{Y+4*tt+3}]")
    a("v_subrev_u32 v5, 64, v5")
    a("v_subrev_u32 v6, 64, v6")
    a("s_add_u32 s62, s62, 1")
    a("s_cmp_lt_u32 s62, 8")
    a.flush()
    a("s_cbranch_scc1 b_cloop")
    a("v_lshlrev_b32 v5, 5, v3")
    a("v_lshl_add_u32 v5, v4, 3, v5")
    a("v_add_u32 v5, s18, v5")
    for tt in range(8):
        a(f"ds_read_b64 v[{BB+2*tt}:{BB+2*tt+1}], v5 offset:{UT_O + 512 + 512*tt}")
    a("s_waitcnt lgkmcnt(0)")
    for tt in range(8):
        for hh in range(2):
            u = BB + 2*tt + hh
            y0 = Y + 4*tt + 2*hh
            a(f"v_lshlrev_b32 v{T}, 16, v{u}")
            a(f"v_and_b32 v{T+1}, 0xffff0000, v{u}")
            a(f"v_mul_f32 v{T}, v{T}, v11")
            a(f"v_mul_f32 v{T+1}, v{T+1}, v11")
            a(f"v_cvt_pk_bf16_f32 v{T}, v{T}, v{T+1}")
            a(f"v_cvt_pk_bf16_f32 v{T+2}, v{y0}, v{y0+1}")
            a(f"v_lshlrev_b32 v{T+3}, 16, v{T}")
            a(f"v_and_b32 v{T}, 0xffff0000, v{T}")
            a(f"v_lshlrev_b32 v{T+4}, 16, v{T+2}")
            a(f"v_and_b32 v{T+2}, 0xffff0000, v{T+2}")
            a(f"v_add_f32 v{T+3}, v{T+3}, v{T+4}")
            a(f"v_add_f32 v{T}, v{T}, v{T+2}")
            a(f"v_cvt_pk_bf16_f32 v{AA+8+hh}, v{T+3}, v{T}")
        a(f"ds_write_b64 v5, v[{AA+8}:{AA+9}] offset:{KE_O + 512*tt}")
    a("s_waitcnt lgkmcnt(0)")
    a("s_barrier")
    a("v_lshlrev_b32 v5, 4, v0")
    for c in range(4):
        a(f"ds_read_b128 v[{BB+4*c}:{BB+4*c+3}], v5 offset:{c*CH_B + KE_O}")
    a("v_lshlrev_b32 v6, 15, v0")
    a("s_lshl_b32 s19, s3, 3")
    a("s_add_u32 s19, s19, 2048")
    a("s_waitcnt lgkmcnt(0)")
    for r in range(8):
        p = r // 2; sel = 60 + r % 2
        a(f"v_perm_b32 v{AA+2*(r%2)}, v{BB+4+p}, v{BB+p}, s{sel}")
        a(f"v_perm_b32 v{AA+2*(r%2)+1}, v{BB+12+p}, v{BB+8+p}, s{sel}")
        a(f"s_add_u32 s56, s19, {r*4096}")
        a(f"buffer_store_dwordx2 v[{AA+2*(r%2)}:{AA+2*(r%2)+1}], v6, s[36:39], s56 offen")
    a.label("b_done")
    a("s_endpgm")
```

```python
from genA import *
from genB import *
hdr = open("concat_heads__spectral_gfnet__ssm_conv_s4d__prompt.s.ref").read().split("; Override")[0]
t1, n1 = emit_table("tab1", tables1()); t2, n2 = emit_table("tab2", tables2()); t3, n3 = emit_table("tab3", tables3())
s = hdr
s += f"; @launch kernel=b_kernel grid=(256,1,1) block=(256,1,1) lds={LDS_B}\n"
s += "; @launch kernel=a1_kernel grid=(64,1,1) block=(512,1,1) lds=78336\n"
s += "; @launch kernel=a2_kernel grid=(544,1,1) block=(64,1,1) lds=0\n"
s += "; @launch kernel=a3_kernel grid=(64,1,1) block=(512,1,1) lds=69632\n"
s += '.amdgcn_target "amdgcn-amd-amdhsa--gfx950"\n.text\n'
for nm, fn, nb in (("a1_kernel", k1, n1), ("a2_kernel", k2, n2), ("a3_kernel", k3, n3)):
    a = Asm(); fn(a, nb)
    s += kernel_head(nm) + a.text()
a = Asm(); kB(a); s += kernel_head("b_kernel") + a.text()
s += '.section .rodata,"a"\n.p2align 6\n'
s += desc("a1_kernel", 256, 256) + ".p2align 6\n" + desc("a2_kernel", 384, 256) + ".p2align 6\n" + desc("a3_kernel", 256, 256)
s += ".p2align 6\n" + desc("b_kernel", 256, 256)
s += t1 + t2 + t3
open("v2.s", "w").write(s)
print(len(s))
```

```python
import numpy as np
from asmlib import Asm

def bf16bits(x):
    u = np.asarray(x, dtype=np.float32).view(np.uint32)
    return (((u + 0x7FFF + ((u >> 16) & 1)) >> 16) & 0xFFFF).astype(np.uint32)

L = np.arange(64)
N32 = L % 32; Q = L // 32

def operand(fn):
    vals = np.zeros((64, 8), dtype=np.float64)
    for l in range(64):
        for t in range(8):
            vals[l, t] = fn(l % 32, l // 32, t)
    b = bf16bits(vals)
    return (b[:, 0::2] | (b[:, 1::2] << 16)).astype(np.uint32)

def f32regs(fn, nreg):
    vals = np.zeros((64, nreg), dtype=np.float32)
    for l in range(64):
        for r in range(nreg):
            vals[l, r] = fn(l % 32, l // 32, r)
    u = vals.view(np.uint32)
    return [u[:, 4*c:4*c+4] for c in range(nreg // 4)]

C = lambda num, den: np.cos(2*np.pi*(num % den)/den)
S = lambda num, den: np.sin(2*np.pi*(num % den)/den)
def slotrow(m, q, t):
    return 8*(2*m + t//4) + 4*q + t % 4
def drow(r, h):
    return 8*(r//4) + 4*h + r % 4

def tables1():
    T = []
    for mp in range(2):
        T.append(operand(lambda n, q, t: 1.0 if n == 16*mp + 8*q + t else 0.0))
    for m in range(2):
        T.append(operand(lambda n, q, t: C(slotrow(m, q, t)*n, 32)))
    for m in range(2):
        T.append(operand(lambda n, q, t: -S(slotrow(m, q, t)*n, 32)))
    T += f32regs(lambda n, h, r: C(drow(r, h)*n, 1024) if r < 16 else S(drow(r-16, h)*n, 1024), 32)
    def l2(cp):
        def f(m):
            def g(i, q, t):
                c, k1 = i // 16, i % 16
                d0 = slotrow(m, q, t)
                if cp == 0: return C(d0*k1, 32) if c == 0 else -S(d0*k1, 32)
                else: return S(d0*k1, 32) if c == 0 else C(d0*k1, 32)
            return operand(g)
        return [f(0), f(1)]
    T += l2(0) + l2(1)
    for c in range(2):
        for ks in range(4):
            def g(i, q, t):
                s1 = 8*ks + 4*q + t//2; cp = t % 2
                if c == 0: return C(s1*i, 32) if cp == 0 else S(s1*i, 32)
                else: return -S(s1*i, 32) if cp == 0 else C(s1*i, 32)
            T.append(operand(g))
    return T

def tables2():
    T = []
    for c in range(2):
        for mt in range(2):
            for ks in range(8):
                def g(i, q, t):
                    f = 32*mt + i; s = 8*ks + 4*q + t//2; cp = t % 2
                    if c == 0: return C(f*s, 64) if cp == 0 else S(f*s, 64)
                    else: return -S(f*s, 64) if cp == 0 else C(f*s, 64)
                T.append(operand(g))
    return T

def tables3():
    T = []
    for c in range(2):
        for ks in range(4):
            def g(i, q, t):
                f0 = 8*ks + 4*q + t//2; cp = t % 2
                if c == 0: return C(f0*i, 32) if cp == 0 else -S(f0*i, 32)
                else: return S(f0*i, 32) if cp == 0 else C(f0*i, 32)
            T.append(operand(g))
    for c in range(2):
        for ks in range(2):
            def g(n, q, t):
                k1 = 8*ks + 4*q + t//2; cp = t % 2
                if c == 0: return C(k1*n, 32) if cp == 0 else -S(k1*n, 32)
                else: return S(k1*n, 32) if cp == 0 else C(k1*n, 32)
            T.append(operand(g))
    T += f32regs(lambda n, h, r: C(drow(r, h)*n, 1024) if r < 16 else S(drow(r-16, h)*n, 1024), 32)
    for ks in range(4):
        def g(n, q, t):
            k0 = 8*ks + 4*q + t//2; cp = t % 2
            return C(k0*n, 32) if cp == 0 else -S(k0*n, 32)
        T.append(operand(g))
    return T

def emit_table(name, T):
    arr = np.concatenate([t.reshape(-1) for t in T])
    s = f".p2align 8\n.type {name},@object\n{name}:\n"
    for i in range(0, len(arr), 8):
        s += ".long " + ",".join("0x%x" % v for v in arr[i:i+8]) + "\n"
    s += f".size {name}, {len(arr)*4}\n"
    return s, len(arr)*4

G_OFF = 0
G_BYTES = 32*17*8192
H_OFF = 0x500000
H_BYTES = 64*17*4096

def srd(a, s, lo, hi, nbytes):
    a(f"s_mov_b32 s{s}, {lo}")
    a(f"s_mov_b32 s{s+1}, {hi}")
    a(f"s_mov_b32 s{s+2}, {nbytes}")
    a(f"s_mov_b32 s{s+3}, 0x20000")

def table_srd(a, s, name, nbytes):
    a(f"s_getpc_b64 s[{s}:{s+1}]")
    a(f"s_add_u32 s{s}, s{s}, {name}@rel32@lo+4")
    a(f"s_addc_u32 s{s+1}, s{s+1}, {name}@rel32@hi+12")
    a(f"s_mov_b32 s{s+2}, {nbytes}")
    a(f"s_mov_b32 s{s+3}, 0x20000")

def load_chunks(a, srd_s, vlane16, dst, first, n, rf='v', stmp=20):
    for c in range(n):
        off = (first + c) * 1024
        if off < 4096:
            a(f"buffer_load_dwordx4 {rf}[{dst+4*c}:{dst+4*c+3}], v{vlane16}, s[{srd_s}:{srd_s+3}], 0 offen offset:{off}")
        else:
            a(f"s_movk_i32 s{stmp}, {off & ~4095}" if (off & ~4095) < 32768 else f"s_mov_b32 s{stmp}, {off & ~4095}")
            a(f"buffer_load_dwordx4 {rf}[{dst+4*c}:{dst+4*c+3}], v{vlane16}, s[{srd_s}:{srd_s+3}], s{stmp} offen offset:{off & 4095}")

MF = "v_mfma_f32_32x32x16_bf16"
STAMP = False
def stamp(a, i):
    if STAMP:
        a(f"s_memtime s[{70+2*i}:{71+2*i}]")
        a("s_waitcnt lgkmcnt(0)")
def stamp_out(a, n, pfx, wave=True):
    if STAMP:
        a("s_waitcnt vmcnt(0)")
        stamp(a, n-1)
        a("s_cmp_eq_u32 s2, 5"); a(f"s_cbranch_scc0 {pfx}_nost")
        if wave:
            a("s_cmp_eq_u32 s16, 0"); a(f"s_cbranch_scc0 {pfx}_nost")
        a("s_load_dwordx2 s[68:69], s[0:1], 88")
        a("s_waitcnt lgkmcnt(0)")
        a("s_mov_b32 s96, s68"); a("s_mov_b32 s97, s69"); a("s_mov_b32 s98, 256"); a("s_mov_b32 s99, 0x20000")
        a("v_mov_b32 v250, 0")
        for i in range(n):
            a(f"s_sub_u32 s68, s{70+2*i}, s70")
            a(f"v_mov_b32 v251, s68")
            a(f"buffer_store_dword v251, v250, s[96:99], 0 offen offset:{4*i}")
        a.label(f"{pfx}_nost")


def k1(a, t1bytes):
    a.label("a1_kernel")
    a("s_cmp_ge_u32 s2, 64")
    a("s_cbranch_scc1 a1_done")
    stamp(a, 0)
    a("s_load_dwordx2 s[24:25], s[0:1], 0")
    a("s_load_dwordx2 s[26:27], s[0:1], 96")
    table_srd(a, 12, "tab1", t1bytes)
    a("v_and_b32 v1, 63, v0")
    a("v_lshrrev_b32 v2, 6, v0")
    a("v_readfirstlane_b32 s16, v2")
    a("v_lshlrev_b32 v2, 4, v1")
    a("v_and_b32 v3, 31, v1")
    a("v_lshrrev_b32 v4, 5, v1")
    a("v_lshlrev_b32 v5, 6, v3")
    a("v_lshl_add_u32 v5, v4, 4, v5")
    a("s_waitcnt lgkmcnt(0)")
    srd(a, 4, "s24", "s25", 4194304)
    srd(a, 8, "s26", "s27", G_BYTES)
    a("s_lshl_b32 s17, s16, 8")
    a("s_add_u32 s17, s17, s2")
    a("s_lshl_b32 s17, s17, 11")
    XL = 8; ID = 16; FC = 24; FS = 32; TW = 40; L2R = 72; L2I = 80
    DX = 88; XA = 104; D1R = 112; D1I = 128; TBR = 144; TBI = 152; D2 = 160; XP = 176; TMP = 184
    a(f"buffer_load_dwordx4 v[{XL}:{XL+3}], v5, s[4:7], s17 offen")
    a(f"buffer_load_dwordx4 v[{XL+4}:{XL+7}], v5, s[4:7], s17 offen offset:32")
    load_chunks(a, 12, 2, ID, 0, 18)
    a("v_mul_u32_u24 v6, 144, v3")
    a("v_mul_u32_u24 v7, 18432, v4")
    a("v_add_u32 v6, v6, v7")
    a("s_lshl_b32 s18, s16, 4")
    a("v_add_u32 v6, s18, v6")
    a(f"s_add_u32 s18, s18, {512*144}")
    a("v_mov_b32 v7, s18")
    a("s_mov_b32 s19, 0")
    if STAMP:
        a("s_waitcnt vmcnt(0)")
    stamp(a, 1)
    a.label("a1_rowloop")
    a("s_waitcnt vmcnt(0)")
    a(f"{MF} v[{DX}:{DX+15}], v[{XL}:{XL+3}], v[{ID}:{ID+3}], 0")
    a(f"{MF} v[{DX}:{DX+15}], v[{XL+4}:{XL+7}], v[{ID+4}:{ID+7}], v[{DX}:{DX+15}]")
    a("s_add_u32 s17, s17, 131072")
    a(f"buffer_load_dwordx4 v[{XL}:{XL+3}], v5, s[4:7], s17 offen")
    a(f"buffer_load_dwordx4 v[{XL+4}:{XL+7}], v5, s[4:7], s17 offen offset:32")
    for j in range(8):
        a(f"v_cvt_pk_bf16_f32 v{XA+j}, v{DX+2*j}, v{DX+2*j+1}")
    a(f"{MF} v[{D1R}:{D1R+15}], v[{XA}:{XA+3}], v[{FC}:{FC+3}], 0")
    a(f"{MF} v[{D1I}:{D1I+15}], v[{XA}:{XA+3}], v[{FS}:{FS+3}], 0")
    a(f"{MF} v[{D1R}:{D1R+15}], v[{XA+4}:{XA+7}], v[{FC+4}:{FC+7}], v[{D1R}:{D1R+15}]")
    a(f"{MF} v[{D1I}:{D1I+15}], v[{XA+4}:{XA+7}], v[{FS+4}:{FS+7}], v[{D1I}:{D1I+15}]")
    a(f"v_sub_f32 v{TMP}, v{D1R}, v{D1R+1}")
    for r in range(2, 16, 2):
        a(f"v_add_f32 v{TMP}, v{TMP}, v{D1R+r}")
        a(f"v_sub_f32 v{TMP}, v{TMP}, v{D1R+r+1}")
    a(f"v_readlane_b32 s22, v{TMP}, 0")
    a(f"v_readlane_b32 s23, v{TMP}, 32")
    for r in range(16):
        a(f"v_mul_f32 v{TMP+1}, v{D1R+r}, v{TW+r}")
        a(f"v_mul_f32 v{TMP+2}, v{D1I+r}, v{TW+r}")
        a(f"v_fma_f32 v{TMP+1}, v{D1I+r}, v{TW+16+r}, v{TMP+1}")
        a(f"v_fma_f32 v{D1I+r}, -v{D1R+r}, v{TW+16+r}, v{TMP+2}")
        a(f"v_mov_b32 v{D1R+r}, v{TMP+1}")
    for j in range(8):
        a(f"v_cvt_pk_bf16_f32 v{TBR+j}, v{D1R+2*j}, v{D1R+2*j+1}")
        a(f"v_cvt_pk_bf16_f32 v{TBI+j}, v{D1I+2*j}, v{D1I+2*j+1}")
    a(f"{MF} v[{D2}:{D2+15}], v[{L2R}:{L2R+3}], v[{TBR}:{TBR+3}], 0")
    a(f"{MF} v[{D2}:{D2+15}], v[{L2R+4}:{L2R+7}], v[{TBR+4}:{TBR+7}], v[{D2}:{D2+15}]")
    a(f"{MF} v[{D2}:{D2+15}], v[{L2I}:{L2I+3}], v[{TBI}:{TBI+3}], v[{D2}:{D2+15}]")
    a(f"{MF} v[{D2}:{D2+15}], v[{L2I+4}:{L2I+7}], v[{TBI+4}:{TBI+7}], v[{D2}:{D2+15}]")
    a(f"v_mov_b32 v{TMP}, s22")
    a(f"v_add_f32 v{TMP}, s23, v{TMP}")
    a(f"v_cvt_pk_bf16_f32 v{TMP}, v{TMP}, 0")
    a(f"ds_write_b32 v7, v{TMP}")
    for r in range(8):
        a(f"v_cvt_pk_bf16_f32 v{XP+r}, v{D2+r}, v{D2+r+8}")
        a(f"ds_write_b32 v6, v{XP+r} offset:{(8*(r//4) + r%4)*4608}")
    a("v_add_u32 v6, 4, v6")
    a("v_add_u32 v7, 4, v7")
    a("s_add_u32 s19, s19, 1")
    a("s_cmp_lt_u32 s19, 4")
    a.flush()
    a("s_cbranch_scc1 a1_rowloop")
    stamp(a, 2)
    S1 = 16; TC = 48; TS = 64; BO = 80; GR = 96; GI = 112; GP = 128; TMP = 144
    a("s_waitcnt vmcnt(0)")
    load_chunks(a, 12, 2, S1, 18, 8)
    a("v_cvt_f32_u32 v8, s2")
    a("v_mul_f32 v8, 0x3a000000, v8")
    a("v_lshlrev_b32 v9, 2, v4")
    a("v_cvt_f32_u32 v9, v9")
    for r in range(16):
        f = float(8*(r//4) + r % 4)
        a(f"v_add_f32 v{TMP}, {f}, v9" if f in (0.0,1.0,2.0,4.0) else f"v_add_f32 v{TMP}, 0x{np.float32(f).view(np.uint32):08x}, v9")
        a(f"v_mul_f32 v{TMP}, v{TMP}, v8")
        a(f"v_cos_f32 v{TC+r}, v{TMP}")
        a(f"v_sin_f32 v{TS+r}, v{TMP}")
    a("v_mul_u32_u24 v6, 144, v3")
    a("v_lshl_add_u32 v6, v4, 4, v6")
    a("s_mul_i32 s18, s16, 4608")
    a("v_add_u32 v6, s18, v6")
    a(f"v_mul_u32_u24 v7, {4*17*8192}, v4")
    a("v_lshl_add_u32 v7, v3, 2, v7")
    a("s_mov_b32 s19, s16")
    a("s_waitcnt lgkmcnt(0)")
    a("s_barrier")
    stamp(a, 3)
    a.label("a1_tileloop")
    for ks in range(4):
        a(f"ds_read_b128 v[{BO+4*ks}:{BO+4*ks+3}], v6 offset:{32*ks}")
    a("s_lshl_b32 s21, s19, 13")
    a("s_lshl_b32 s22, s2, 7")
    a("s_add_u32 s21, s21, s22")
    a("s_waitcnt vmcnt(0) lgkmcnt(0)")
    for ks in range(4):
        c0 = "0" if ks == 0 else f"v[{GR}:{GR+15}]"
        c1 = "0" if ks == 0 else f"v[{GI}:{GI+15}]"
        a(f"{MF} v[{GR}:{GR+15}], v[{S1+4*ks}:{S1+4*ks+3}], v[{BO+4*ks}:{BO+4*ks+3}], {c0}")
        a(f"{MF} v[{GI}:{GI+15}], v[{S1+16+4*ks}:{S1+16+4*ks+3}], v[{BO+4*ks}:{BO+4*ks+3}], {c1}")
    for r in range(16):
        a(f"v_mul_f32 v{TMP+1}, v{GR+r}, v{TC+r}")
        a(f"v_mul_f32 v{TMP+2}, v{GI+r}, v{TC+r}")
        a(f"v_fma_f32 v{TMP+1}, v{GI+r}, v{TS+r}, v{TMP+1}")
        a(f"v_fma_f32 v{TMP+2}, -v{GR+r}, v{TS+r}, v{TMP+2}")
        a(f"v_cvt_pk_bf16_f32 v{GP+r}, v{TMP+1}, v{TMP+2}")
        f = 8*(r//4) + r % 4
        a(f"s_add_u32 s22, s21, {f*17*8192}")
        a(f"buffer_store_dword v{GP+r}, v7, s[8:11], s22 offen")
    a(f"v_add_u32 v6, {8*4608}, v6")
    a("s_add_u32 s19, s19, 8")
    a("s_cmp_lt_u32 s19, 17")
    a.flush()
    a("s_cbranch_scc1 a1_tileloop")
    stamp_out(a, 5, "a1")
    a.label("a1_done")
    a("s_endpgm")

def k2(a, t2bytes):
    a.label("a2_kernel")
    a("s_cmp_ge_u32 s2, 544")
    a("s_cbranch_scc1 a2_done")
    stamp(a, 0)
    a("s_load_dwordx4 s[24:27], s[0:1], 8")
    a("s_load_dwordx2 s[28:29], s[0:1], 96")
    table_srd(a, 12, "tab2", t2bytes)
    a("s_and_b32 s16, s2, 31")
    a("s_lshr_b32 s17, s2, 5")
    a("v_lshlrev_b32 v2, 4, v0")
    a("v_and_b32 v3, 31, v0")
    a("v_lshrrev_b32 v4, 5, v0")
    a("s_waitcnt lgkmcnt(0)")
    srd(a, 4, "s28", "s29", G_BYTES)
    a(f"s_add_u32 s8, s28, {H_OFF}")
    a("s_addc_u32 s9, s29, 0")
    a(f"s_mov_b32 s10, {H_BYTES}")
    a("s_mov_b32 s11, 0x20000")
    srd(a, 32, "s24", "s25", 2048*513*2)
    srd(a, 36, "s26", "s27", 2048*513*2)
    DA = 8; AC = 40; WV = 104; TC = 168; TS = 200; TMP = 232
    a("s_mul_i32 s18, s16, 17")
    a("s_add_u32 s18, s18, s17")
    a("s_lshl_b32 s18, s18, 13")
    a("s_add_u32 s19, s18, 4096")
    a("v_lshlrev_b32 v5, 9, v4")
    a("v_lshl_add_u32 v5, v3, 2, v5")
    for ks in range(8):
        for b in range(4):
            off = (8*ks + b)*128
            sreg = 18 if off < 4096 else 19
            a(f"buffer_load_dword v{DA+4*ks+b}, v5, s[4:7], s{sreg} offen offset:{off & 4095}")
    load_chunks(a, 12, 2, 0, 0, 32, rf='a')
    a(f"v_mul_u32_u24 v6, {4*32*513*2}, v4")
    a("v_lshl_add_u32 v6, v3, 1, v6")
    a("s_mul_i32 s21, s16, 1026")
    a("s_lshl_b32 s22, s17, 6")
    a("s_add_u32 s21, s21, s22")
    for mt in range(2):
        for r in range(16):
            f1 = 32*mt + 8*(r//4) + r % 4
            a(f"s_add_u32 s22, s21, {f1*32832}")
            a(f"buffer_load_ushort v{WV+16*mt+r}, v6, s[32:35], s22 offen")
            a(f"buffer_load_ushort v{WV+32+16*mt+r}, v6, s[36:39], s22 offen")
    a("v_cvt_f32_u32 v7, s16")
    a("v_mul_f32 v7, 0x3a000000, v7")
    a("v_lshlrev_b32 v1, 2, v4")
    a("v_cvt_f32_u32 v1, v1")
    a("s_lshl_b32 s22, s17, 5")
    a("v_add_u32 v5, s22, v3")
    a("v_and_b32 v5, 511, v5")
    a("v_cmp_eq_u32 vcc, 0, v5")
    a("v_mov_b32 v5, 0x35800000")
    a("v_mov_b32 v6, 0x35000000")
    a("v_cndmask_b32 v5, v5, v6, vcc")
    for mt in range(2):
        for r in range(16):
            f = float(32*mt + 8*(r//4) + r % 4)
            a(f"v_add_f32 v{TMP}, 0x{np.float32(f).view(np.uint32):08x}, v1")
            a(f"v_mul_f32 v{TMP}, v{TMP}, v7")
            a(f"v_cos_f32 v{TMP+1}, v{TMP}")
            a(f"v_sin_f32 v{TMP+2}, v{TMP}")
            a(f"v_mul_f32 v{TC+16*mt+r}, v{TMP+1}, v5")
            a(f"v_mul_f32 v{TS+16*mt+r}, v{TMP+2}, v5")
    stamp(a, 1)
    a("s_waitcnt vmcnt(0)")
    stamp(a, 2)
    def dft(src):
        for ks in range(8):
            for m4 in range(4):
                c = "0" if ks == 0 else f"v[{AC+16*m4}:{AC+16*m4+15}]"
                ai = (m4*8 + ks)*4
                a(f"{MF} v[{AC+16*m4}:{AC+16*m4+15}], a[{ai}:{ai+3}], v[{src+4*ks}:{src+4*ks+3}], {c}")
    dft(DA)
    for mt in range(2):
        for r in range(16):
            fr = AC + 16*mt + r; fi = AC + 32 + 16*mt + r; w = WV + 16*mt + r
            a(f"v_lshlrev_b32 v{TMP}, 16, v{w}")
            a(f"v_lshlrev_b32 v{TMP+1}, 16, v{w+32}")
            a(f"v_mul_f32 v{TMP+2}, v{fr}, v{TMP}")
            a(f"v_mul_f32 v{TMP+3}, v{fr}, v{TMP+1}")
            a(f"v_fma_f32 v{TMP+2}, -v{fi}, v{TMP+1}, v{TMP+2}")
            a(f"v_fma_f32 v{TMP+3}, -v{fi}, v{TMP}, -v{TMP+3}")
            a(f"v_cvt_pk_bf16_f32 v{DA+16*mt+r}, v{TMP+2}, v{TMP+3}")
    dft(DA)
    stamp(a, 3)
    a(f"v_mul_u32_u24 v5, {4*17*4096}, v4")
    a("v_lshl_add_u32 v5, v3, 2, v5")
    a("s_lshl_b32 s21, s17, 5")
    a("s_add_u32 s21, s21, s16")
    a("s_lshl_b32 s21, s21, 7")
    for mt in range(2):
        for r in range(16):
            fr = AC + 16*mt + r; fi = AC + 32 + 16*mt + r; c = TC + 16*mt + r; s = TS + 16*mt + r
            a(f"v_mul_f32 v{TMP+2}, v{fr}, v{c}")
            a(f"v_mul_f32 v{TMP+3}, v{fr}, v{s}")
            a(f"v_fma_f32 v{TMP+2}, v{fi}, v{s}, v{TMP+2}")
            a(f"v_fma_f32 v{TMP+3}, -v{fi}, v{c}, v{TMP+3}")
            a(f"v_cvt_pk_bf16_f32 v{DA+16*mt+r}, v{TMP+2}, v{TMP+3}")
            s0 = 32*mt + 8*(r//4) + r % 4
            a(f"s_add_u32 s22, s21, {s0*69632}")
            a(f"buffer_store_dword v{DA+16*mt+r}, v5, s[8:11], s22 offen")
    stamp_out(a, 5, "a2", False)
    a.label("a2_done")
    a("s_endpgm")

def k3(a, t3bytes):
    a.label("a3_kernel")
    a("s_cmp_ge_u32 s2, 64")
    a("s_cbranch_scc1 a3_done")
    stamp(a, 0)
    a("s_load_dwordx2 s[24:25], s[0:1], 80")
    a("s_load_dwordx2 s[26:27], s[0:1], 96")
    table_srd(a, 12, "tab3", t3bytes)
    a("v_and_b32 v1, 63, v0")
    a("v_lshrrev_b32 v2, 6, v0")
    a("v_readfirstlane_b32 s16, v2")
    a("v_lshlrev_b32 v2, 4, v1")
    a("v_and_b32 v3, 31, v1")
    a("v_lshrrev_b32 v4, 5, v1")
    a("s_waitcnt lgkmcnt(0)")
    srd(a, 4, "s24", "s25", 2048*2048*2)
    a(f"s_add_u32 s8, s26, {H_OFF}")
    a("s_addc_u32 s9, s27, 0")
    a(f"s_mov_b32 s10, {H_BYTES}")
    a("s_mov_b32 s11, 0x20000")
    S1 = 16; L1 = 48; TW = 64; L2 = 96; BO = 112; ZR = 128; ZI = 144; ZP = 160; TMP = 176; Y = 184
    load_chunks(a, 12, 2, S1, 0, 24)
    a("v_lshlrev_b32 v5, 9, v4")
    a("v_lshl_add_u32 v5, v3, 2, v5")
    a(f"v_mul_u32_u24 v6, {4*2176}, v4")
    a("v_lshl_add_u32 v6, v3, 2, v6")
    a("s_lshl_b32 s18, s16, 7")
    a("v_add_u32 v6, s18, v6")
    a("s_mov_b32 s19, s16")
    a.label("a3_tileloop")
    a("s_mul_i32 s21, s2, 17")
    a("s_add_u32 s21, s21, s19")
    a("s_lshl_b32 s21, s21, 12")
    for ks in range(4):
        for b in range(4):
            a(f"buffer_load_dword v{BO+4*ks+b}, v5, s[8:11], s21 offen offset:{(8*ks+b)*128}")
    a("s_waitcnt vmcnt(0)")
    for ks in range(4):
        c0 = "0" if ks == 0 else f"v[{ZR}:{ZR+15}]"
        c1 = "0" if ks == 0 else f"v[{ZI}:{ZI+15}]"
        a(f"{MF} v[{ZR}:{ZR+15}], v[{S1+4*ks}:{S1+4*ks+3}], v[{BO+4*ks}:{BO+4*ks+3}], {c0}")
        a(f"{MF} v[{ZI}:{ZI+15}], v[{S1+16+4*ks}:{S1+16+4*ks+3}], v[{BO+4*ks}:{BO+4*ks+3}], {c1}")
    for r in range(16):
        a(f"v_cvt_pk_bf16_f32 v{ZP+r}, v{ZR+r}, v{ZI+r}")
        a(f"ds_write_b32 v6, v{ZP+r} offset:{(8*(r//4)+r%4)*2176}")
    a("v_add_u32 v6, 1024, v6")
    a("s_add_u32 s19, s19, 8")
    a("s_cmp_lt_u32 s19, 17")
    a.flush()
    a("s_cbranch_scc1 a3_tileloop")
    stamp(a, 1)
    a("s_mul_i32 s18, s16, 8704")
    a("v_add_u32 v6, s18, v5")
    a("s_add_u32 s18, s18, 2048")
    a("v_mov_b32 v7, s18")
    a("v_lshlrev_b32 v8, 6, v3")
    a("v_lshl_add_u32 v8, v4, 3, v8")
    a("s_lshl_b32 s17, s16, 8")
    a("s_add_u32 s17, s17, s2")
    a("s_lshl_b32 s17, s17, 12")
    a("s_mov_b32 s19, 0")
    a("s_waitcnt lgkmcnt(0)")
    a("s_barrier")
    stamp(a, 2)
    a.label("a3_rowloop")
    for ks in range(2):
        for b in range(4):
            a(f"ds_read_b32 v{BO+4*ks+b}, v6 offset:{(8*ks+b)*128}")
    a(f"ds_read_b32 v{TMP}, v7")
    a("s_waitcnt lgkmcnt(0)")
    VR = ZR; VI = ZI; VP = ZP
    a(f"{MF} v[{VR}:{VR+15}], v[{BO}:{BO+3}], v[{L1}:{L1+3}], 0")
    a(f"{MF} v[{VI}:{VI+15}], v[{BO}:{BO+3}], v[{L1+8}:{L1+11}], 0")
    a(f"{MF} v[{VR}:{VR+15}], v[{BO+4}:{BO+7}], v[{L1+4}:{L1+7}], v[{VR}:{VR+15}]")
    a(f"{MF} v[{VI}:{VI+15}], v[{BO+4}:{BO+7}], v[{L1+12}:{L1+15}], v[{VI}:{VI+15}]")
    a(f"v_lshlrev_b32 v{TMP}, 16, v{TMP}")
    for r in range(16):
        if r % 2 == 0: a(f"v_mov_b32 v{Y+r}, v{TMP}")
        else: a(f"v_sub_f32 v{Y+r}, 0, v{TMP}")
    for r in range(16):
        a(f"v_mul_f32 v{TMP+1}, v{VR+r}, v{TW+r}")
        a(f"v_mul_f32 v{TMP+2}, v{VI+r}, v{TW+r}")
        a(f"v_fma_f32 v{TMP+1}, -v{VI+r}, v{TW+16+r}, v{TMP+1}")
        a(f"v_fma_f32 v{TMP+2}, v{VR+r}, v{TW+16+r}, v{TMP+2}")
        a(f"v_cvt_pk_bf16_f32 v{VP+r}, v{TMP+1}, v{TMP+2}")
    for ks in range(4):
        a(f"{MF} v[{Y}:{Y+15}], v[{VP+4*ks}:{VP+4*ks+3}], v[{L2+4*ks}:{L2+4*ks+3}], v[{Y}:{Y+15}]")
    for aa in range(4):
        a(f"v_cvt_pk_bf16_f32 v{TMP+2*(aa%2)+2}, v{Y+4*aa}, v{Y+4*aa+1}")
        a(f"v_cvt_pk_bf16_f32 v{TMP+2*(aa%2)+3}, v{Y+4*aa+2}, v{Y+4*aa+3}")
        a(f"buffer_store_dwordx2 v[{TMP+2*(aa%2)+2}:{TMP+2*(aa%2)+3}], v8, s[4:7], s17 offen offset:{16*aa}")
    a("v_add_u32 v6, 2176, v6")
    a("v_add_u32 v7, 2176, v7")
    a("s_add_u32 s17, s17, 262144")
    a("s_add_u32 s19, s19, 1")
    a("s_cmp_lt_u32 s19, 4")
    a.flush()
    a("s_cbranch_scc1 a3_rowloop")
    stamp_out(a, 4, "a3")
    a.label("a3_done")
    a("s_endpgm")

def desc(name, vgpr, accum, sgpr=102):
    return f""".amdhsa_kernel {name}
  .amdhsa_next_free_vgpr {vgpr}
  .amdhsa_next_free_sgpr {sgpr}
  .amdhsa_accum_offset {accum}
  .amdhsa_group_segment_fixed_size 0
  .amdhsa_kernarg_size 104
  .amdhsa_user_sgpr_count 2
  .amdhsa_user_sgpr_kernarg_segment_ptr 1
  .amdhsa_system_sgpr_workgroup_id_x 1
.end_amdhsa_kernel
"""

def kernel_head(name):
    return f".globl {name}\n.p2align 8\n.type {name},@function\n"
```

```python
import numpy as np, sys
from asmlib import Asm
import genA
from genA import operand, f32regs, C, S, slotrow, drow, tables1, tables3, emit_table, srd, table_srd, load_chunks, desc, kernel_head, bf16bits, MF
MF16 = "v_mfma_f32_16x16x32_bf16"
def f2u(f): return "0x%08x" % np.float32(f).view(np.uint32)
STAMP = len(sys.argv) > 1 and sys.argv[1] == "stamp"

G_OFF = 0;            G_BYTES = 32*17*8192
H_OFF = 0x500000;     H_BYTES = 64*17*4096
UT_OFF = 0xA00000;    UT_BYTES = 1024*4096
YT_OFF = 0xE00000;    YT_BYTES = 1024*4096
KD_OFF = 0x1200000;   KD_PITCH = 1344; KD_BYTES = 1024*KD_PITCH

def ws_srd(a, s, lo, hi, off, nbytes):
    a(f"s_add_u32 s{s}, {lo}, {off}")
    a(f"s_addc_u32 s{s+1}, {hi}, 0")
    a(f"s_mov_b32 s{s+2}, {nbytes}")
    a(f"s_mov_b32 s{s+3}, 0x20000")

def stamp(a, i):
    if STAMP:
        a(f"s_memtime s[{70+2*i}:{71+2*i}]")
        a("s_waitcnt lgkmcnt(0)")
def stamp_out(a, n, pfx, wg, slot):
    if STAMP:
        a("s_waitcnt vmcnt(0)")
        stamp(a, n-1)
        a(f"s_cmp_eq_u32 s2, {wg}"); a(f"s_cbranch_scc0 {pfx}_nost")
        a("s_cmp_eq_u32 s16, 0"); a(f"s_cbranch_scc0 {pfx}_nost")
        a("s_load_dwordx2 s[68:69], s[0:1], 88")
        a("s_waitcnt lgkmcnt(0)")
        a("s_mov_b32 s96, s68"); a("s_mov_b32 s97, s69"); a("s_mov_b32 s98, 256"); a("s_mov_b32 s99, 0x20000")
        a("v_mov_b32 v100, 0")
        for i in range(n):
            a(f"s_sub_u32 s68, s{70+2*i}, s70")
            a(f"v_mov_b32 v101, s68")
            a(f"buffer_store_dword v101, v100, s[96:99], 0 offen offset:{4*(slot*12+i)}")
        a.label(f"{pfx}_nost")

def operand16(fn):
    vals = np.zeros((64, 8), dtype=np.float64)
    for l in range(64):
        for t in range(8):
            vals[l, t] = fn(l % 16, l // 16, t)
    b = bf16bits(vals)
    return (b[:, 0::2] | (b[:, 1::2] << 16)).astype(np.uint32)

def tables2b():
    T = []
    for c in range(2):
        for mt in range(4):
            for ks in range(4):
                def g(i, gg, t):
                    f = 16*mt + i; s = 16*ks + 4*gg + t//2; cp = t % 2
                    if c == 0: return C(f*s, 64) if cp == 0 else S(f*s, 64)
                    else: return -S(f*s, 64) if cp == 0 else C(f*s, 64)
                T.append(operand16(g))
    return T

X0 = 2064
def tableX():
    ids = np.zeros((320, 16), dtype=np.uint32)
    for lam in range(320):
        for t in range(9):
            l = X0 - 8*lam - t
            if l < 0 or l > 2047: i = 641
            elif l < 128: i = l
            else: i = int(bf16bits(np.float32(l))) - 0x4300 + 128
            ids[lam, t] = 2*i
    return [(ids[:, 0::2] | (ids[:, 1::2] << 16)).astype(np.uint32)]

def cmul2(a, dr, di, ar, ai, br, bi, t):
    a(f"v_mul_f32 v{t}, v{ai}, v{bi}")
    a(f"v_mul_f32 v{di}, v{ar}, v{bi}")
    a(f"v_fma_f32 v{dr}, v{ar}, v{br}, -v{t}")
    a(f"v_fma_f32 v{di}, v{ai}, v{br}, v{di}")

def A1(a, t1bytes):
    stamp(a, 0)
    a("s_load_dwordx2 s[24:25], s[0:1], 0")
    a("s_load_dwordx2 s[26:27], s[0:1], 96")
    table_srd(a, 12, "tab1", t1bytes)
    a("v_lshlrev_b32 v2, 4, v1")
    a("v_and_b32 v3, 31, v1")
    a("v_lshrrev_b32 v4, 5, v1")
    a("v_lshlrev_b32 v5, 6, v3")
    a("v_lshl_add_u32 v5, v4, 4, v5")
    a("s_waitcnt lgkmcnt(0)")
    srd(a, 4, "s24", "s25", 4194304)
    srd(a, 8, "s26", "s27", G_BYTES)
    a("s_lshl_b32 s17, s16, 8")
    a("s_add_u32 s17, s17, s2")
    a("s_lshl_b32 s17, s17, 11")
    XL = 8; ID = 16; FC = 24; FS = 32; TW = 40; L2R = 72; L2I = 80
    DX = 88; XA = 104; D1R = 112; D1I = 128; TBR = 144; TBI = 152; D2 = 160; XP = 176; TMP = 184
    S1 = 192; TC = 224; TS = 240
    a(f"buffer_load_dwordx4 v[{XL}:{XL+3}], v5, s[4:7], s17 offen")
    a(f"buffer_load_dwordx4 v[{XL+4}:{XL+7}], v5, s[4:7], s17 offen offset:32")
    load_chunks(a, 12, 2, ID, 0, 18)
    load_chunks(a, 12, 2, S1, 18, 8)
    a("v_mul_u32_u24 v6, 144, v3")
    a("v_mul_u32_u24 v7, 18432, v4")
    a("v_add_u32 v6, v6, v7")
    a("s_lshl_b32 s18, s16, 4")
    a("v_add_u32 v6, s18, v6")
    a(f"s_add_u32 s18, s18, {512*144}")
    a("v_mov_b32 v7, s18")
    a(f"v_cvt_f32_u32 v{TMP+4}, s2")
    a(f"v_mul_f32 v{TMP+4}, 0x3a000000, v{TMP+4}")
    a(f"v_lshlrev_b32 v{TMP+5}, 2, v4")
    a(f"v_cvt_f32_u32 v{TMP+5}, v{TMP+5}")
    for r in range(16):
        f = float(8*(r//4) + r % 4)
        a(f"v_add_f32 v{TMP}, {f2u(f)}, v{TMP+5}")
        a(f"v_mul_f32 v{TMP}, v{TMP}, v{TMP+4}")
        a(f"v_cos_f32 v{TC+r}, v{TMP}")
        a(f"v_sin_f32 v{TS+r}, v{TMP}")
    a("s_mov_b32 s19, 0")
    stamp(a, 1)
    a.label("a1_rowloop")
    a("s_waitcnt vmcnt(0)")
    a(f"{MF} v[{DX}:{DX+15}], v[{XL}:{XL+3}], v[{ID}:{ID+3}], 0")
    a(f"{MF} v[{DX}:{DX+15}], v[{XL+4}:{XL+7}], v[{ID+4}:{ID+7}], v[{DX}:{DX+15}]")
    a("s_add_u32 s17, s17, 131072")
    a(f"buffer_load_dwordx4 v[{XL}:{XL+3}], v5, s[4:7], s17 offen")
    a(f"buffer_load_dwordx4 v[{XL+4}:{XL+7}], v5, s[4:7], s17 offen offset:32")
    for j in range(8):
        a(f"v_cvt_pk_bf16_f32 v{XA+j}, v{DX+2*j}, v{DX+2*j+1}")
    a(f"{MF} v[{D1R}:{D1R+15}], v[{XA}:{XA+3}], v[{FC}:{FC+3}], 0")
    a(f"{MF} v[{D1R}:{D1R+15}], v[{XA+4}:{XA+7}], v[{FC+4}:{FC+7}], v[{D1R}:{D1R+15}]")
    a(f"{MF} v[{D1I}:{D1I+15}], v[{XA}:{XA+3}], v[{FS}:{FS+3}], 0")
    a(f"{MF} v[{D1I}:{D1I+15}], v[{XA+4}:{XA+7}], v[{FS+4}:{FS+7}], v[{D1I}:{D1I+15}]")
    a(f"v_sub_f32 v{TMP}, v{D1R}, v{D1R+1}")
    for r in range(2, 16, 2):
        a(f"v_add_f32 v{TMP}, v{TMP}, v{D1R+r}")
        a(f"v_sub_f32 v{TMP}, v{TMP}, v{D1R+r+1}")
    a(f"v_readlane_b32 s22, v{TMP}, 0")
    a(f"v_readlane_b32 s23, v{TMP}, 32")
    for r in range(16):
        a(f"v_mul_f32 v{DX+r}, v{D1R+r}, v{TW+r}")
        a(f"v_mul_f32 v{TMP+2}, v{D1I+r}, v{TW+r}")
        a(f"v_fma_f32 v{DX+r}, v{D1I+r}, v{TW+16+r}, v{DX+r}")
        a(f"v_fma_f32 v{D1I+r}, -v{D1R+r}, v{TW+16+r}, v{TMP+2}")
        if r % 2 == 1:
            a(f"v_cvt_pk_bf16_f32 v{TBR+r//2}, v{DX+r-1}, v{DX+r}")
            a(f"v_cvt_pk_bf16_f32 v{TBI+r//2}, v{D1I+r-1}, v{D1I+r}")
    a(f"{MF} v[{D2}:{D2+15}], v[{L2R}:{L2R+3}], v[{TBR}:{TBR+3}], 0")
    a(f"{MF} v[{D2}:{D2+15}], v[{L2I}:{L2I+3}], v[{TBI}:{TBI+3}], v[{D2}:{D2+15}]")
    a(f"{MF} v[{D2}:{D2+15}], v[{L2R+4}:{L2R+7}], v[{TBR+4}:{TBR+7}], v[{D2}:{D2+15}]")
    a(f"{MF} v[{D2}:{D2+15}], v[{L2I+4}:{L2I+7}], v[{TBI+4}:{TBI+7}], v[{D2}:{D2+15}]")
    a(f"v_mov_b32 v{TMP}, s22")
    a(f"v_add_f32 v{TMP}, s23, v{TMP}")
    a(f"v_cvt_pk_bf16_f32 v{TMP}, v{TMP}, 0")
    a(f"ds_write_b32 v7, v{TMP}")
    a("v_add_u32 v7, 4, v7")
    a("s_add_u32 s19, s19, 1")
    for r in range(8):
        a(f"v_cvt_pk_bf16_f32 v{XP+r}, v{D2+r}, v{D2+r+8}")
        a(f"ds_write_b32 v6, v{XP+r} offset:{(8*(r//4) + r%4)*4608}")
    a("v_add_u32 v6, 4, v6")
    a("s_cmp_lt_u32 s19, 4")
    a.flush()
    a("s_cbranch_scc1 a1_rowloop")
    stamp(a, 2)
    BO = 80; GR = 96; GI = 112; GP = 128; TMP = 144
    a("v_mul_u32_u24 v6, 144, v3")
    a("v_lshl_add_u32 v6, v4, 4, v6")
    a("s_mul_i32 s18, s16, 4608")
    a("v_add_u32 v6, s18, v6")
    a(f"v_mul_u32_u24 v7, {4*17*8192}, v4")
    a("v_lshl_add_u32 v7, v3, 2, v7")
    a("s_mov_b32 s19, s16")
    a("s_waitcnt lgkmcnt(0)")
    a("s_barrier")
    stamp(a, 3)
    a.label("a1_tileloop")
    for ks in range(4):
        a(f"ds_read_b128 v[{BO+4*ks}:{BO+4*ks+3}], v6 offset:{32*ks}")
    a("s_lshl_b32 s21, s19, 13")
    a("s_lshl_b32 s22, s2, 7")
    a("s_add_u32 s21, s21, s22")
    for ks in range(4):
        a(f"s_waitcnt lgkmcnt({3-ks})")
        c0 = "0" if ks == 0 else f"v[{GR}:{GR+15}]"
        c1 = "0" if ks == 0 else f"v[{GI}:{GI+15}]"
        a(f"{MF} v[{GR}:{GR+15}], v[{S1+4*ks}:{S1+4*ks+3}], v[{BO+4*ks}:{BO+4*ks+3}], {c0}")
        a(f"{MF} v[{GI}:{GI+15}], v[{S1+16+4*ks}:{S1+16+4*ks+3}], v[{BO+4*ks}:{BO+4*ks+3}], {c1}")
    for r in range(16):
        a(f"v_mul_f32 v{TMP+1}, v{GR+r}, v{TC+r}")
        a(f"v_mul_f32 v{TMP+2}, v{GI+r}, v{TC+r}")
        a(f"v_fma_f32 v{TMP+1}, v{GI+r}, v{TS+r}, v{TMP+1}")
        a(f"v_fma_f32 v{TMP+2}, -v{GR+r}, v{TS+r}, v{TMP+2}")
        a(f"v_cvt_pk_bf16_f32 v{GP+r}, v{TMP+1}, v{TMP+2}")
        f = 8*(r//4) + r % 4
        a(f"s_add_u32 s22, s21, {f*17*8192}")
        a(f"buffer_store_dword v{GP+r}, v7, s[8:11], s22 offen")
    a(f"v_add_u32 v6, {8*4608}, v6")
    a("s_add_u32 s19, s19, 8")
    a("s_cmp_lt_u32 s19, 17")
    a.flush()
    a("s_cbranch_scc1 a1_tileloop")
    stamp_out(a, 5, "a1", 5, 0)
    a("s_endpgm")

KG_W = 17408
def KGEN(a):
    stamp(a, 0)
    a("s_load_dwordx8 s[40:47], s[0:1], 32")
    a("s_load_dwordx2 s[48:49], s[0:1], 64")
    a("s_load_dwordx2 s[50:51], s[0:1], 96")
    a("s_sub_u32 s17, s2, 64")
    a("s_lshl_b32 s17, s17, 3")
    a("s_add_u32 s17, s17, s16")
    a(f"s_mul_i32 s18, s16, {KG_W}")
    a("v_and_b32 v3, 15, v1")
    a("v_lshrrev_b32 v4, 4, v1")
    a("s_waitcnt lgkmcnt(0)")
    srd(a, 8, "s40", "s41", 262144)
    srd(a, 12, "s42", "s43", 262144)
    srd(a, 20, "s44", "s45", 262144)
    srd(a, 24, "s46", "s47", 262144)
    srd(a, 28, "s48", "s49", 2048)
    ws_srd(a, 32, "s50", "s51", KD_OFF, KD_BYTES)
    a("s_lshl_b32 s19, s17, 8")
    a("v_lshlrev_b32 v5, 1, v1")
    for hf in range(2):
        for k, sr in enumerate((8, 12, 20, 24)):
            a(f"buffer_load_ushort v{16+4*hf+k}, v5, s[{sr}:{sr+3}], s19 offen offset:{128*hf}")
    a("s_lshl_b32 s19, s17, 1")
    a("v_mov_b32 v6, 0")
    a("buffer_load_ushort v10, v6, s[28:31], s19 offen")
    a("v_mul_u32_u24 v5, 1088, v4")
    a("v_bfe_u32 v6, v1, 2, 2")
    a("v_mul_u32_u24 v6, 272, v6")
    a("v_and_b32 v7, 3, v1")
    a("v_lshl_add_u32 v6, v7, 2, v6")
    a("v_add3_u32 v5, v5, v6, s18")
    a("v_mul_u32_u24 v8, 272, v4")
    a("v_lshl_add_u32 v8, v3, 4, v8")
    a("v_add_u32 v8, s18, v8")
    ACC = 128
    for r in range(12): a(f"v_mov_b32 v{ACC+r}, 0")
    a("s_waitcnt vmcnt(0)")
    stamp(a, 1)
    a("v_lshlrev_b32 v10, 16, v10")
    a(f"v_mul_f32 v10, {f2u(np.log2(np.e))}, v10")
    a("v_exp_f32 v10, v10")
    a("v_cvt_pk_bf16_f32 v10, v10, 0")
    a("v_lshlrev_b32 v10, 16, v10")
    a("v_add_f32 v9, v10, v10")
    a("s_mov_b32 s62, 0")
    BOPS = 3*4352
    a.label("kg_loop")
    T = 24
    for k in range(4): a(f"v_lshlrev_b32 v{12+k}, 16, v{16+k}")
    a(f"v_mul_f32 v{T}, {f2u(np.log2(np.e))}, v12")
    a(f"v_exp_f32 v{T}, v{T}")
    a(f"v_cvt_pk_bf16_f32 v{T}, v{T}, 0")
    a(f"v_lshlrev_b32 v{T}, 16, v{T}")
    a(f"v_mul_f32 v{T}, v{T}, v10")
    a(f"v_mul_f32 v12, {f2u(np.log2(np.e))}, v{T}")
    a(f"v_mul_f32 v13, v13, v10")
    a(f"v_mul_f32 v13, {f2u(1/(2*np.pi))}, v13")
    a("v_mul_f32 v14, v14, v9")
    a("v_mul_f32 v15, v15, v9")
    for k in range(4): a(f"v_mov_b32 v{16+k}, v{20+k}")
    R = 32; RR = 48; CR = 50; P = 56
    def cexp(dr, di, mult):
        a(f"v_mul_f32 v{T}, {f2u(-mult)}, v12")
        a(f"v_mul_f32 v{T+1}, {f2u(mult)}, v13")
        a(f"v_fract_f32 v{T+1}, v{T+1}")
        a(f"v_exp_f32 v{T}, v{T}")
        a(f"v_cos_f32 v{dr}, v{T+1}")
        a(f"v_sin_f32 v{di}, v{T+1}")
        a(f"v_mul_f32 v{dr}, v{dr}, v{T}")
        a(f"v_mul_f32 v{di}, v{di}, v{T}")
    rr = lambda k: R + 2*(k-1)
    cexp(rr(1), rr(1)+1, 1)
    cexp(RR, RR+1, 128)
    def pw(k, x, y): cmul2(a, rr(k), rr(k)+1, rr(x), rr(x)+1, rr(y), rr(y)+1, T)
    pw(2,1,1); pw(3,2,1); pw(4,2,2); pw(5,4,1); pw(6,4,2); pw(7,4,3); pw(8,4,4)
    bseq = []; aseq = []
    class Rec:
        def __init__(s): s.l = []
        def __call__(s, t): s.l.append(t)
    rb = Rec(); ra = Rec()
    rb(f"v_mov_b32 v{P}, 0x3f80")
    rb(f"ds_write_b32 v5, v{P} offset:{BOPS}")
    rb(f"v_cvt_pk_bf16_f32 v{P+1}, v{rr(8)}, v{rr(8)+1}")
    rb(f"ds_write_b32 v5, v{P+1} offset:{BOPS+16}")
    cur = (rr(8), rr(8)+1); bufs = [(60, 61), (62, 63)]
    for j in range(2, 16):
        d = bufs[j % 2]
        cmul2(rb, d[0], d[1], cur[0], cur[1], rr(8), rr(8)+1, T+2)
        rb(f"v_cvt_pk_bf16_f32 v{P+j%2}, v{d[0]}, v{d[1]}")
        rb(f"ds_write_b32 v5, v{P+j%2} offset:{BOPS+16*j}")
        cur = d
    cnt = [0]
    def wrA(tile, row, vr, vi):
        p = P + 2 + cnt[0] % 2; cnt[0] += 1
        ra(f"v_cvt_pk_bf16_f32 v{p}, v{vr}, -v{vi}")
        ra(f"ds_write_b32 v5, v{p} offset:{tile*4352 + row*16}")
    cb = [(CR, CR+1), (CR+2, CR+3)]
    cur = (14, 15)
    pr = [(64, 65), (66, 67)]; pc = [0]
    def prod(cur, e):
        d = pr[pc[0] % 2]; pc[0] += 1
        cmul2(ra, d[0], d[1], cur[0], cur[1], rr(e), rr(e)+1, T+3)
        return d
    for i in range(17):
        if i > 0:
            d = cb[i % 2]
            cmul2(ra, d[0], d[1], cur[0], cur[1], RR, RR+1, T+4)
            cur = d
        if i < 2:
            wrA(0, 8*i, cur[0], cur[1])
            for e in range(1, 8):
                d2 = prod(cur, e); wrA(0, 8*i + e, d2[0], d2[1])
        elif i < 4:
            wrA(1, 4*(i-2), cur[0], cur[1])
            for e in range(1, 4):
                d2 = prod(cur, 2*e); wrA(1, 4*(i-2) + e, d2[0], d2[1])
        elif i < 8:
            wrA(1, 8 + 2*(i-4), cur[0], cur[1])
            d2 = prod(cur, 4); wrA(1, 8 + 2*(i-4) + 1, d2[0], d2[1])
        else:
            wrA(2, i-8, cur[0], cur[1])
    ia = ib = 0
    while ia < len(ra.l) or ib < len(rb.l):
        for _ in range(3):
            if ia < len(ra.l): a(ra.l[ia]); ia += 1
        if ib < len(rb.l): a(rb.l[ib]); ib += 1
    BO = 72; AO = 88
    a("s_waitcnt lgkmcnt(0)")
    for s in range(4):
        a(f"ds_read_b128 v[{BO+4*s}:{BO+4*s+3}], v8 offset:{BOPS + 1088*s}")
    for tile in range(3):
        for s in range(4):
            if tile < 2:
                a(f"ds_read_b128 v[{AO+16*tile+4*s}:{AO+16*tile+4*s+3}], v8 offset:{tile*4352 + 1088*s}")
            else:
                a(f"ds_read_b128 v[{140+4*s}:{140+4*s+3}], v8 offset:{tile*4352 + 1088*s}")
    a("s_waitcnt lgkmcnt(0)")
    for s in range(4):
        for tile in range(3):
            ao = AO+16*tile+4*s if tile < 2 else 140+4*s
            a(f"{MF16} v[{ACC+4*tile}:{ACC+4*tile+3}], v[{ao}:{ao+3}], v[{BO+4*s}:{BO+4*s+3}], v[{ACC+4*tile}:{ACC+4*tile+3}]")
    a("s_add_u32 s62, s62, 1")
    a("s_cmp_lt_u32 s62, 2")
    a.flush()
    a("s_cbranch_scc1 kg_loop")
    stamp(a, 2)
    a(f"s_mul_i32 s19, s17, {KD_PITCH}")
    a("v_lshrrev_b32 v6, 1, v4")
    a("v_lshlrev_b32 v6, 7, v6")
    a("v_and_b32 v7, 1, v4")
    a("v_lshl_add_u32 v6, v7, 2, v6")
    a("v_lshl_add_u32 v6, v3, 3, v6")
    a("v_lshlrev_b32 v6, 1, v6")
    a("v_cmp_gt_u32 vcc, 2, v4")
    a("v_lshlrev_b32 v7, 2, v3")
    a("v_lshlrev_b32 v8, 1, v3")
    a("v_cndmask_b32 v7, v8, v7, vcc")
    a("v_lshl_add_u32 v7, v4, 6, v7")
    a("v_lshlrev_b32 v7, 1, v7")
    a("v_mov_b32 v8, 60")
    a("v_cndmask_b32 v8, v8, 0, vcc")
    a("v_add_u32 v8, v7, v8")
    a(f"v_cvt_pk_bf16_f32 v{T}, v{ACC}, v{ACC+1}")
    a(f"v_cvt_pk_bf16_f32 v{T+1}, v{ACC+2}, v{ACC+3}")
    a(f"buffer_store_dwordx2 v[{T}:{T+1}], v6, s[32:35], s19 offen")
    a(f"v_cvt_pk_bf16_f32 v{T+2}, v{ACC+4}, v{ACC+5}")
    a(f"v_cvt_pk_bf16_f32 v{T+3}, v{ACC+6}, v{ACC+7}")
    a(f"buffer_store_dword v{T+2}, v7, s[32:35], s19 offen offset:512")
    a(f"buffer_store_dword v{T+3}, v8, s[32:35], s19 offen offset:516")
    a("v_lshl_add_u32 v6, v4, 6, v3")
    a("v_lshlrev_b32 v6, 1, v6")
    for r in range(4):
        a(f"v_cvt_pk_bf16_f32 v{T+4+r}, v{ACC+8+r}, 0")
    a("s_mov_b32 exec_hi, 0")
    for r in range(4):
        a(f"buffer_store_short v{T+4+r}, v6, s[32:35], s19 offen offset:{1024 + 32*r}")
    a("s_mov_b32 exec_lo, 0")
    a("s_mov_b32 exec_hi, 1")
    a(f"buffer_store_dword v{T+4}, v6, s[32:35], s19 offen offset:1024")
    a("s_mov_b64 exec, -1")
    stamp_out(a, 4, "kg", 70, 1)
    a("s_endpgm")

def TRANSP(a, which):
    if which == 'u':
        a("s_load_dwordx2 s[40:41], s[0:1], 24")
        a("s_sub_u32 s17, s2, 192")
    else:
        a("s_load_dwordx2 s[40:41], s[0:1], 80")
        a("s_sub_u32 s17, s2, 64")
    a("s_load_dwordx2 s[42:43], s[0:1], 96")
    a("s_lshl_b32 s17, s17, 3")
    a("s_add_u32 s17, s17, s16")
    a("s_lshr_b32 s18, s17, 4")
    a("s_and_b32 s19, s17, 15")
    a("v_and_b32 v3, 7, v1")
    a("v_lshrrev_b32 v4, 3, v1")
    a("s_mov_b32 s60, 0x05040100")
    a("s_mov_b32 s61, 0x07060302")
    a("s_waitcnt lgkmcnt(0)")
    if which == 'u':
        srd(a, 4, "s40", "s41", 4194304)
        ws_srd(a, 8, "s42", "s43", UT_OFF, UT_BYTES)
        a("v_lshlrev_b32 v5, 14, v4")
        a("v_lshl_add_u32 v5, v3, 4, v5")
        a("s_lshl_b32 s20, s18, 17")
        a("s_lshl_b32 s21, s19, 7")
        a("s_add_u32 s20, s20, s21")
        lstep = 2048
        a("v_lshlrev_b32 v6, 15, v3")
        a("v_lshl_add_u32 v6, v4, 4, v6")
        a("s_lshl_b32 s22, s19, 18")
        a("s_lshl_b32 s21, s18, 7")
        a("s_add_u32 s22, s22, s21")
        sstep = 4096
    else:
        ws_srd(a, 4, "s42", "s43", YT_OFF, YT_BYTES)
        srd(a, 8, "s40", "s41", 8388608)
        a("v_lshlrev_b32 v5, 15, v4")
        a("v_lshl_add_u32 v5, v3, 4, v5")
        a("s_lshl_b32 s20, s19, 18")
        a("s_lshl_b32 s21, s18, 7")
        a("s_add_u32 s20, s20, s21")
        lstep = 4096
        a("v_lshlrev_b32 v6, 15, v3")
        a("v_lshl_add_u32 v6, v4, 4, v6")
        a("s_lshl_b32 s22, s18, 18")
        a("s_lshl_b32 s21, s19, 7")
        a("s_add_u32 s22, s22, s21")
        a("s_add_u32 s22, s22, 2048")
        sstep = 4096
    L = 16; O = 48
    for r in range(8):
        a(f"s_add_u32 s23, s20, {r*lstep}")
        a(f"buffer_load_dwordx4 v[{L+4*r}:{L+4*r+3}], v5, s[4:7], s23 offen")
    a("s_waitcnt vmcnt(0)")
    for c in range(8):
        for p in range(4):
            a(f"v_perm_b32 v{O+4*c+p}, v{L+4*(2*p+1)+c//2}, v{L+4*(2*p)+c//2}, s{60+c%2}")
        a(f"s_add_u32 s23, s22, {c*sstep}")
        a(f"buffer_store_dwordx4 v[{O+4*c}:{O+4*c+3}], v6, s[8:11], s23 offen")
    a("s_endpgm")

CV_UT = 0; CV_KE = 4672; CV_KO = 4672 + 4224; CV_W = 4672 + 2*4224
def CONV(a, txbytes):
    stamp(a, 0)
    a("s_load_dwordx2 s[40:41], s[0:1], 72")
    a("s_load_dwordx2 s[42:43], s[0:1], 96")
    table_srd(a, 64, "tabX", txbytes)
    a("s_lshl_b32 s17, s2, 2")
    a("s_add_u32 s17, s17, s16")
    a(f"s_mul_i32 s18, s16, {CV_W}")
    a("v_and_b32 v3, 15, v1")
    a("v_lshrrev_b32 v4, 4, v1")
    a("v_lshlrev_b32 v2, 4, v1")
    a("s_waitcnt lgkmcnt(0)")
    srd(a, 32, "s40", "s41", 2048)
    ws_srd(a, 4, "s42", "s43", UT_OFF, UT_BYTES)
    ws_srd(a, 8, "s42", "s43", KD_OFF, KD_BYTES)
    ws_srd(a, 12, "s42", "s43", YT_OFF, YT_BYTES)
    a(f"s_mul_i32 s19, s17, {KD_PITCH}")
    a("buffer_load_dwordx4 v[16:19], v2, s[8:11], s19 offen")
    a("buffer_load_dwordx4 v[20:23], v2, s[8:11], s19 offen offset:1024")
    TX = 24
    a("v_lshlrev_b32 v8, 5, v1")
    for c in range(5):
        a(f"s_movk_i32 s57, {2048*c}")
        a(f"buffer_load_dwordx4 v[{TX+4*c}:{TX+4*c+3}], v8, s[64:67], s57 offen")
        a(f"buffer_load_dword v{TX+20+c}, v8, s[64:67], s57 offen offset:16")
    UL = 140
    a("s_lshl_b32 s19, s17, 12")
    for c in range(4):
        a(f"buffer_load_dwordx4 v[{UL+4*c}:{UL+4*c+3}], v2, s[4:7], s19 offen offset:{1024*c}")
    a("s_lshl_b32 s19, s17, 1")
    a("v_mov_b32 v6, 0")
    a("buffer_load_ushort v11, v6, s[32:35], s19 offen")
    a("v_add_u32 v6, s18, v2")
    a("v_mov_b32 v9, s18")
    a("s_waitcnt vmcnt(15)")
    a("ds_write_b128 v6, v[16:19]")
    a("ds_write_b128 v6, v[20:23] offset:1024")
    a("s_waitcnt vmcnt(5) lgkmcnt(0)")
    stamp(a, 1)
    E = 56; T = 12
    for c in range(5):
        for t in range(9):
            src = TX+4*c+t//2 if t < 8 else TX+20+c
            a(f"v_add_u32_sdwa v{T+t%4}, v{src}, v9 dst_sel:DWORD dst_unused:UNUSED_PAD src0_sel:WORD_{t%2} src1_sel:DWORD")
            a(f"ds_read_u16 v{E+10*c+t}, v{T+t%4}")
    a("s_waitcnt lgkmcnt(0)")
    PK = 108
    for c in range(5):
        for p in range(4):
            a(f"v_lshl_or_b32 v{PK+8*(c%2)+p}, v{E+10*c+2*p+1}, 16, v{E+10*c+2*p}")
            a(f"v_lshl_or_b32 v{PK+8*(c%2)+4+p}, v{E+10*c+2*p+2}, 16, v{E+10*c+2*p+1}")
        if c == 4:
            a("s_mov_b32 exec_lo, 0xff"); a("s_mov_b32 exec_hi, 0")
        a(f"ds_write_b128 v6, v[{PK+8*(c%2)}:{PK+8*(c%2)+3}] offset:{CV_KE + 1024*c}")
        a(f"ds_write_b128 v6, v[{PK+8*(c%2)+4}:{PK+8*(c%2)+7}] offset:{CV_KO + 1024*c}")
        if c == 4:
            a("s_mov_b64 exec, -1")
    a("v_mov_b32 v12, 0"); a("v_mov_b32 v13, 0"); a("v_mov_b32 v14, 0"); a("v_mov_b32 v15, 0")
    a("v_and_b32 v7, 0x1f0, v2")
    a("v_add_u32 v7, s18, v7")
    a(f"ds_write_b128 v7, v[12:15] offset:{CV_UT}")
    a("v_and_b32 v7, 0x30, v2")
    a("v_add_u32 v7, s18, v7")
    a(f"ds_write_b128 v7, v[12:15] offset:{CV_UT + 4608}")
    a("s_waitcnt vmcnt(0)")
    for c in range(4):
        a(f"ds_write_b128 v6, v[{UL+4*c}:{UL+4*c+3}] offset:{CV_UT + 512 + 1024*c}")
    a("v_lshlrev_b32 v11, 16, v11")
    a("v_lshlrev_b32 v5, 3, v4")
    a("v_sub_u32 v5, v5, v3")
    a(f"v_add_u32 v5, {X0}, v5")
    a("v_and_b32 v7, 1, v5")
    a("v_and_b32 v5, -2, v5")
    a("v_lshlrev_b32 v5, 1, v5")
    a(f"v_mul_u32_u24 v7, {CV_KO-CV_KE}, v7")
    a("v_add3_u32 v5, v5, v7, s18")
    a(f"v_add_u32 v5, {CV_KE}, v5")
    a("v_lshlrev_b32 v6, 5, v3")
    a("v_lshl_add_u32 v6, v4, 4, v6")
    a("v_add_u32 v6, s18, v6")
    Y = 16; BB = 48; AA = 112
    for r in range(32): a(f"v_mov_b32 v{Y+r}, 0")
    a("s_waitcnt lgkmcnt(0)")
    stamp(a, 2)
    XB = BB + 32
    a(f"ds_read_b128 v[{AA+16}:{AA+19}], v6 offset:{CV_UT}")
    for aa in range(1, 9):
        a(f"v_subrev_u32 v7, {512*aa}, v5")
        a(f"ds_read2_b32 v[{XB+4*(aa-1)}:{XB+4*(aa-1)+1}], v7 offset0:0 offset1:1")
        a(f"ds_read2_b32 v[{XB+4*(aa-1)+2}:{XB+4*(aa-1)+3}], v7 offset0:2 offset1:3")
    def loadB(k):
        B = BB + 32*(k % 2)
        for b in range(8):
            a(f"ds_read_b128 v[{B+4*b}:{B+4*b+3}], v6 offset:{CV_UT + 512*(b+1) - 64*k}")
    def loadA(k, aa):
        A = AA + 4*((8*k + aa) % 4)
        a(f"v_subrev_u32 v7, {64*k + 512*aa}, v5")
        a(f"ds_read2_b32 v[{A}:{A+1}], v7 offset0:0 offset1:1")
        a(f"ds_read2_b32 v[{A+2}:{A+3}], v7 offset0:2 offset1:3")
    loadB(0); loadA(0, 0); loadA(0, 1)
    a("s_waitcnt lgkmcnt(12)")
    for aa in range(1, 9):
        tt = aa - 1
        a(f"{MF16} v[{Y+4*tt}:{Y+4*tt+3}], v[{XB+4*(aa-1)}:{XB+4*(aa-1)+3}], v[{AA+16}:{AA+19}], v[{Y+4*tt}:{Y+4*tt+3}]")
    seq = [(k, aa) for k in range(8) for aa in range(8)]
    for idx, (k, aa) in enumerate(seq):
        if aa == 1 and k < 7:
            loadB(k+1)
        if idx + 2 < len(seq):
            loadA(*seq[idx+2])
        n = 0
        if idx + 1 < len(seq): n += 2
        if idx + 2 < len(seq): n += 2
        if k < 7 and aa in (1, 2): n += 8
        a(f"s_waitcnt lgkmcnt({min(n, 15)})")
        A = AA + 4*(idx % 4); B = BB + 32*(k % 2)
        for b in range(8 - aa):
            tt = aa + b
            a(f"{MF16} v[{Y+4*tt}:{Y+4*tt+3}], v[{A}:{A+3}], v[{B+4*b}:{B+4*b+3}], v[{Y+4*tt}:{Y+4*tt+3}]")
    stamp(a, 3)
    a("v_lshlrev_b32 v5, 5, v3")
    a("v_lshl_add_u32 v5, v4, 3, v5")
    a("v_add_u32 v6, s18, v5")
    for tt in range(8):
        a(f"ds_read_b64 v[{BB+2*tt}:{BB+2*tt+1}], v6 offset:{CV_UT + 512 + 512*tt}")
    a("s_lshl_b32 s19, s17, 12")
    a("s_waitcnt lgkmcnt(0)")
    T2 = 100
    for tt in range(8):
        for hh in range(2):
            u = BB + 2*tt + hh
            y0 = Y + 4*tt + 2*hh
            a(f"v_lshlrev_b32 v{T2}, 16, v{u}")
            a(f"v_and_b32 v{T2+1}, 0xffff0000, v{u}")
            a(f"v_mul_f32 v{T2}, v{T2}, v11")
            a(f"v_mul_f32 v{T2+1}, v{T2+1}, v11")
            a(f"v_cvt_pk_bf16_f32 v{T2}, v{T2}, v{T2+1}")
            a(f"v_cvt_pk_bf16_f32 v{T2+2}, v{y0}, v{y0+1}")
            a(f"v_lshlrev_b32 v{T2+3}, 16, v{T2}")
            a(f"v_and_b32 v{T2}, 0xffff0000, v{T2}")
            a(f"v_lshlrev_b32 v{T2+4}, 16, v{T2+2}")
            a(f"v_and_b32 v{T2+2}, 0xffff0000, v{T2+2}")
            a(f"v_add_f32 v{T2+3}, v{T2+3}, v{T2+4}")
            a(f"v_add_f32 v{T2}, v{T2}, v{T2+2}")
            a(f"v_cvt_pk_bf16_f32 v{T2+8+2*(tt%2)+hh}, v{T2+3}, v{T2}")
        a(f"buffer_store_dwordx2 v[{T2+8+2*(tt%2)}:{T2+9+2*(tt%2)}], v5, s[12:15], s19 offen offset:{512*tt}")
    stamp_out(a, 5, "cv", 5, 0)
    a("s_endpgm")

def A2(a, t2bytes):
    stamp(a, 0)
    a("s_load_dwordx4 s[24:27], s[0:1], 8")
    a("s_load_dwordx2 s[28:29], s[0:1], 96")
    table_srd(a, 12, "tab2", t2bytes)
    a("s_sub_u32 s3, s2, 256")
    a("s_lshl_b32 s3, s3, 2")
    a("s_add_u32 s3, s3, s16")
    a("s_and_b32 s18, s3, 31")
    a("s_lshr_b32 s17, s3, 5")
    a("v_lshlrev_b32 v2, 4, v1")
    a("v_and_b32 v3, 15, v1")
    a("v_lshrrev_b32 v4, 4, v1")
    TB = 100
    a("s_lshl_b32 s20, s16, 13")
    for c in range(8):
        if c < 4: a(f"buffer_load_dwordx4 v[{TB+4*c}:{TB+4*c+3}], v2, s[12:15], s20 offen offset:{1024*c}")
        else:
            if c == 4: a("s_add_u32 s21, s20, 4096")
            a(f"buffer_load_dwordx4 v[{TB+4*c}:{TB+4*c+3}], v2, s[12:15], s21 offen offset:{1024*(c-4)}")
    a("s_waitcnt lgkmcnt(0)")
    srd(a, 4, "s28", "s29", G_BYTES)
    ws_srd(a, 8, "s28", "s29", H_OFF, H_BYTES)
    srd(a, 32, "s24", "s25", 2048*513*2)
    srd(a, 36, "s26", "s27", 2048*513*2)
    DA = 8; AC = 24; WV = 56; TC = 132; TS = 148; TMP = 88; AB = 100
    a("s_mul_i32 s19, s18, 17")
    a("s_lshr_b32 s21, s17, 1")
    a("s_add_u32 s19, s19, s21")
    a("s_lshl_b32 s19, s19, 13")
    a("s_and_b32 s21, s17, 1")
    a("s_lshl_b32 s21, s21, 6")
    a("s_add_u32 s19, s19, s21")
    a("s_add_u32 s21, s19, 4096")
    a("v_lshlrev_b32 v5, 9, v4")
    a("v_lshl_add_u32 v5, v3, 2, v5")
    for ks in range(4):
        for b in range(4):
            off = (16*ks + b)*128
            sreg = 19 if off < 4096 else 21
            a(f"buffer_load_dword v{DA+4*ks+b}, v5, s[4:7], s{sreg} offen offset:{off & 4095}")
    a(f"v_mul_u32_u24 v6, {4*32*513*2}, v4")
    a("v_lshl_add_u32 v6, v3, 1, v6")
    a("s_mul_i32 s21, s18, 1026")
    a("s_lshl_b32 s22, s17, 5")
    a("s_add_u32 s21, s21, s22")
    for mt in range(4):
        for r in range(4):
            f1 = 16*mt + r
            a(f"s_add_u32 s22, s21, {f1*32832}")
            a(f"buffer_load_ushort v{WV+4*mt+r}, v6, s[32:35], s22 offen")
            a(f"buffer_load_ushort v{WV+16+4*mt+r}, v6, s[36:39], s22 offen")
    a("s_lshl_b32 s20, s16, 13")
    a("v_add_u32 v7, s20, v2")
    a("s_waitcnt vmcnt(48)")
    for c in range(8):
        a(f"ds_write_b128 v7, v[{TB+4*c}:{TB+4*c+3}] offset:{1024*c}")
    a("v_cvt_f32_u32 v7, s18")
    a("v_mul_f32 v7, 0x3a000000, v7")
    a(f"v_lshlrev_b32 v{TMP+4}, 2, v4")
    a(f"v_cvt_f32_u32 v{TMP+4}, v{TMP+4}")
    a("s_lshl_b32 s22, s17, 4")
    a("v_add_u32 v5, s22, v3")
    a("v_and_b32 v5, 511, v5")
    a("v_cmp_eq_u32 vcc, 0, v5")
    a("v_mov_b32 v5, 0x35800000")
    a("v_mov_b32 v6, 0x35000000")
    a("v_cndmask_b32 v5, v5, v6, vcc")
    for mt in range(4):
        for r in range(4):
            f = float(16*mt + r)
            a(f"v_add_f32 v{TMP}, {f2u(f)}, v{TMP+4}")
            a(f"v_mul_f32 v{TMP}, v{TMP}, v7")
            a(f"v_cos_f32 v{TMP+1}, v{TMP}")
            a(f"v_sin_f32 v{TMP+2}, v{TMP}")
            a(f"v_mul_f32 v{TC+4*mt+r}, v{TMP+1}, v5")
            a(f"v_mul_f32 v{TS+4*mt+r}, v{TMP+2}, v5")
    a("s_waitcnt lgkmcnt(0)")
    a("s_barrier")
    stamp(a, 1)
    def dft(src):
        order = [(m8, ks) for ks in range(4) for m8 in range(8)]
        def ld(i):
            m8, ks = order[i]
            a(f"ds_read_b128 v[{AB+4*(i%8)}:{AB+4*(i%8)+3}], v2 offset:{(m8*4+ks)*1024}")
        for i in range(6): ld(i)
        for i, (m8, ks) in enumerate(order):
            if i + 6 < 32: ld(i+6)
            a(f"s_waitcnt lgkmcnt({min(6, 31-i)})")
            c = "0" if ks == 0 else f"v[{AC+4*m8}:{AC+4*m8+3}]"
            a(f"{MF16} v[{AC+4*m8}:{AC+4*m8+3}], v[{AB+4*(i%8)}:{AB+4*(i%8)+3}], v[{src+4*ks}:{src+4*ks+3}], {c}")
    a("s_waitcnt vmcnt(32)")
    dft(DA)
    a("s_waitcnt vmcnt(0)")
    stamp(a, 2)
    for mt in range(4):
        for r in range(4):
            fr = AC + 4*mt + r; fi = AC + 16 + 4*mt + r; w = WV + 4*mt + r
            a(f"v_lshlrev_b32 v{TMP}, 16, v{w}")
            a(f"v_lshlrev_b32 v{TMP+1}, 16, v{w+16}")
            a(f"v_mul_f32 v{TMP+2}, v{fr}, v{TMP}")
            a(f"v_mul_f32 v{TMP+3}, v{fr}, v{TMP+1}")
            a(f"v_fma_f32 v{TMP+2}, -v{fi}, v{TMP+1}, v{TMP+2}")
            a(f"v_fma_f32 v{TMP+3}, -v{fi}, v{TMP}, -v{TMP+3}")
            a(f"v_cvt_pk_bf16_f32 v{DA+4*mt+r}, v{TMP+2}, v{TMP+3}")
    dft(DA)
    stamp(a, 3)
    a(f"v_mul_u32_u24 v5, {4*17*4096}, v4")
    a("v_lshl_add_u32 v5, v3, 2, v5")
    a("s_lshr_b32 s21, s17, 1")
    a("s_lshl_b32 s21, s21, 5")
    a("s_add_u32 s21, s21, s18")
    a("s_lshl_b32 s21, s21, 7")
    a("s_and_b32 s22, s17, 1")
    a("s_lshl_b32 s22, s22, 6")
    a("s_add_u32 s21, s21, s22")
    for mt in range(4):
        for r in range(4):
            fr = AC + 4*mt + r; fi = AC + 16 + 4*mt + r; c = TC + 4*mt + r; s = TS + 4*mt + r
            a(f"v_mul_f32 v{TMP+2}, v{fr}, v{c}")
            a(f"v_mul_f32 v{TMP+3}, v{fr}, v{s}")
            a(f"v_fma_f32 v{TMP+2}, v{fi}, v{s}, v{TMP+2}")
            a(f"v_fma_f32 v{TMP+3}, -v{fi}, v{c}, v{TMP+3}")
            a(f"v_cvt_pk_bf16_f32 v{DA+4*mt+r}, v{TMP+2}, v{TMP+3}")
            s0 = 16*mt + r
            a(f"s_add_u32 s22, s21, {s0*69632}")
            a(f"buffer_store_dword v{DA+4*mt+r}, v5, s[8:11], s22 offen")
    stamp_out(a, 5, "a2", 300, 1)
    a("s_endpgm")

def A3(a, t3bytes):
    stamp(a, 0)
    a("s_load_dwordx2 s[24:25], s[0:1], 80")
    a("s_load_dwordx2 s[26:27], s[0:1], 96")
    table_srd(a, 12, "tab3", t3bytes)
    a("v_lshlrev_b32 v2, 4, v1")
    a("v_and_b32 v3, 31, v1")
    a("v_lshrrev_b32 v4, 5, v1")
    a("s_waitcnt lgkmcnt(0)")
    srd(a, 4, "s24", "s25", 2048*2048*2)
    ws_srd(a, 8, "s26", "s27", H_OFF, H_BYTES)
    S1 = 16; L1 = 48; TW = 64; L2 = 96; BO = 112; ZR = 128; ZI = 144; ZP = 160; TMP = 176; Y = 184
    B2 = 200; B3 = 216
    a("v_lshlrev_b32 v5, 9, v4")
    a("v_lshl_add_u32 v5, v3, 2, v5")
    a("s_mul_i32 s21, s2, 17")
    a("s_add_u32 s21, s21, s16")
    a("s_lshl_b32 s21, s21, 12")
    a("s_add_u32 s22, s21, 32768")
    a("s_mul_i32 s23, s2, 17")
    a("s_add_u32 s23, s23, 16")
    a("s_lshl_b32 s23, s23, 12")
    for (base, sreg) in ((BO, 21), (B2, 22), (B3, 23)):
        for ks in range(4):
            for b in range(4):
                a(f"buffer_load_dword v{base+4*ks+b}, v5, s[8:11], s{sreg} offen offset:{(8*ks+b)*128}")
    load_chunks(a, 12, 2, S1, 0, 24)
    a(f"v_mul_u32_u24 v6, {4*2176}, v4")
    a("v_lshl_add_u32 v6, v3, 2, v6")
    a("s_lshl_b32 s18, s16, 7")
    a("v_add_u32 v6, s18, v6")
    a(f"v_mul_u32_u24 v7, {4*2176}, v4")
    a("v_lshl_add_u32 v7, v3, 2, v7")
    a("s_waitcnt vmcnt(16)")
    def tile(base, vaddr, off):
        for ks in range(4):
            c0 = "0" if ks == 0 else f"v[{ZR}:{ZR+15}]"
            c1 = "0" if ks == 0 else f"v[{ZI}:{ZI+15}]"
            a(f"{MF} v[{ZR}:{ZR+15}], v[{S1+4*ks}:{S1+4*ks+3}], v[{base+4*ks}:{base+4*ks+3}], {c0}")
            a(f"{MF} v[{ZI}:{ZI+15}], v[{S1+16+4*ks}:{S1+16+4*ks+3}], v[{base+4*ks}:{base+4*ks+3}], {c1}")
        for r in range(16):
            a(f"v_cvt_pk_bf16_f32 v{ZP+r}, v{ZR+r}, v{ZI+r}")
            a(f"ds_write_b32 v{vaddr}, v{ZP+r} offset:{(8*(r//4)+r%4)*2176 + off}")
    tile(BO, 6, 0)
    tile(B2, 6, 1024)
    a("s_cmp_eq_u32 s16, 7")
    a("s_cbranch_scc0 a3_skip16")
    tile(B3, 7, 2048)
    a.label("a3_skip16")
    stamp(a, 1)
    a("s_mul_i32 s18, s16, 8704")
    a("v_add_u32 v6, s18, v5")
    a("s_add_u32 s18, s18, 2048")
    a("v_mov_b32 v7, s18")
    a("v_lshlrev_b32 v8, 6, v3")
    a("v_lshl_add_u32 v8, v4, 3, v8")
    a("s_lshl_b32 s17, s16, 8")
    a("s_add_u32 s17, s17, s2")
    a("s_lshl_b32 s17, s17, 12")
    a("s_mov_b32 s19, 0")
    a("s_waitcnt vmcnt(0) lgkmcnt(0)")
    a("s_barrier")
    stamp(a, 2)
    a.label("a3_rowloop")
    for ks in range(2):
        for b in range(4):
            a(f"ds_read_b32 v{BO+4*ks+b}, v6 offset:{(8*ks+b)*128}")
    a(f"ds_read_b32 v{TMP}, v7")
    VR = ZR; VI = ZI; VP = ZP
    a("s_waitcnt lgkmcnt(5)")
    a(f"{MF} v[{VR}:{VR+15}], v[{BO}:{BO+3}], v[{L1}:{L1+3}], 0")
    a(f"{MF} v[{VI}:{VI+15}], v[{BO}:{BO+3}], v[{L1+8}:{L1+11}], 0")
    a("s_waitcnt lgkmcnt(1)")
    a(f"{MF} v[{VR}:{VR+15}], v[{BO+4}:{BO+7}], v[{L1+4}:{L1+7}], v[{VR}:{VR+15}]")
    a(f"{MF} v[{VI}:{VI+15}], v[{BO+4}:{BO+7}], v[{L1+12}:{L1+15}], v[{VI}:{VI+15}]")
    a("s_waitcnt lgkmcnt(0)")
    a(f"v_lshlrev_b32 v{TMP}, 16, v{TMP}")
    for r in range(16):
        if r % 2 == 0: a(f"v_mov_b32 v{Y+r}, v{TMP}")
        else: a(f"v_sub_f32 v{Y+r}, 0, v{TMP}")
    for r in range(16):
        a(f"v_mul_f32 v{TMP+1}, v{VR+r}, v{TW+r}")
        a(f"v_mul_f32 v{TMP+2}, v{VI+r}, v{TW+r}")
        a(f"v_fma_f32 v{TMP+1}, -v{VI+r}, v{TW+16+r}, v{TMP+1}")
        a(f"v_fma_f32 v{TMP+2}, v{VR+r}, v{TW+16+r}, v{TMP+2}")
        a(f"v_cvt_pk_bf16_f32 v{VP+r}, v{TMP+1}, v{TMP+2}")
    for ks in range(4):
        a(f"{MF} v[{Y}:{Y+15}], v[{VP+4*ks}:{VP+4*ks+3}], v[{L2+4*ks}:{L2+4*ks+3}], v[{Y}:{Y+15}]")
    a("v_add_u32 v6, 2176, v6")
    a("v_add_u32 v7, 2176, v7")
    a("s_add_u32 s19, s19, 1")
    for aa in range(4):
        a(f"v_cvt_pk_bf16_f32 v{TMP+2*(aa%2)+2}, v{Y+4*aa}, v{Y+4*aa+1}")
        a(f"v_cvt_pk_bf16_f32 v{TMP+2*(aa%2)+3}, v{Y+4*aa+2}, v{Y+4*aa+3}")
        a(f"buffer_store_dwordx2 v[{TMP+2*(aa%2)+2}:{TMP+2*(aa%2)+3}], v8, s[4:7], s17 offen offset:{16*aa}")
    a("s_add_u32 s17, s17, 262144")
    a("s_cmp_lt_u32 s19, 4")
    a.flush()
    a("s_cbranch_scc1 a3_rowloop")
    stamp_out(a, 4, "a3", 5, 0)
    a("s_endpgm")

def prologue(a):
    a("v_and_b32 v1, 63, v0")
    a("v_lshrrev_b32 v2, 6, v0")
    a("v_readfirstlane_b32 s16, v2")

def build():
    hdr = open("concat_heads__spectral_gfnet__ssm_conv_s4d__prompt.s.ref").read().split("; Override")[0]
    t1, n1 = emit_table("tab1", tables1()); t2, n2 = emit_table("tab2", tables2b()); t3, n3 = emit_table("tab3", tables3())
    tx, nx = emit_table("tabX", tableX())
    s = hdr
    s += f"; @launch kernel=k1_kernel grid=(256,1,1) block=(512,1,1) lds={8*KG_W}\n"
    s += f"; @launch kernel=k2_kernel grid=(520,1,1) block=(256,1,1) lds={4*CV_W}\n"
    s += "; @launch kernel=k3_kernel grid=(128,1,1) block=(512,1,1) lds=69632\n"
    s += '.amdgcn_target "amdgcn-amd-amdhsa--gfx950"\n.text\n'
    a = Asm(); a.label("k1_kernel"); prologue(a)
    a("s_cmp_ge_u32 s2, 64"); a("s_cbranch_scc1 k1_b")
    A1(a, n1)
    a.label("k1_b")
    a("s_cmp_ge_u32 s2, 192"); a("s_cbranch_scc1 k1_c")
    KGEN(a)
    a.label("k1_c")
    a("s_cmp_ge_u32 s2, 256"); a("s_cbranch_scc1 k1_d")
    TRANSP(a, 'u')
    a.label("k1_d"); a("s_endpgm")
    s += kernel_head("k1_kernel") + a.text()
    a = Asm(); a.label("k2_kernel"); prologue(a)
    a("s_cmp_ge_u32 s2, 256"); a("s_cbranch_scc1 k2_b")
    CONV(a, nx)
    a.label("k2_b")
    a("s_cmp_ge_u32 s2, 520"); a("s_cbranch_scc1 k2_c")
    A2(a, n2)
    a.label("k2_c"); a("s_endpgm")
    s += kernel_head("k2_kernel") + a.text()
    a = Asm(); a.label("k3_kernel"); prologue(a)
    a("s_cmp_ge_u32 s2, 64"); a("s_cbranch_scc1 k3_b")
    A3(a, n3)
    a.label("k3_b")
    a("s_cmp_ge_u32 s2, 128"); a("s_cbranch_scc1 k3_c")
    TRANSP(a, 'y')
    a.label("k3_c"); a("s_endpgm")
    s += kernel_head("k3_kernel") + a.text()
    s += '.section .rodata,"a"\n.p2align 6\n'
    s += desc("k1_kernel", 256, 256) + ".p2align 6\n" + desc("k2_kernel", 168, 168) + ".p2align 6\n" + desc("k3_kernel", 256, 256)
    s += t1 + t2 + t3 + tx
    return s
if __name__ == "__main__":
    s = build()
    fn = "v4s.s" if STAMP else "v4.s"
    open(fn, "w").write(s)
    print(len(s))
```
